```python
import torch

def _softmax(x, axis=-1):
    return torch.softmax(x, dim=axis)
def _gelu(x):
    return torch.nn.functional.gelu(x, approximate="tanh")
def _silu(x):
    return torch.nn.functional.silu(x)
def _sigmoid(x):
    return torch.sigmoid(x)
def _layernorm(x, axis=-1, eps=1e-5):
    m = x.mean(dim=axis, keepdim=True)
    v = x.var(dim=axis, keepdim=True, unbiased=False)
    return (x - m) / torch.sqrt(v + eps)
def _scatter_add(tgt, idx, src, axis=0):
    return tgt.clone().index_add_(axis, idx, src)
def _segment_sum(src, seg, n):
    out = torch.zeros((n,) + src.shape[1:], dtype=src.dtype)
    return out.index_add_(0, seg, src)
def _pad(x, pw):
    flat = tuple(v for pair in reversed(pw) for v in pair)
    return torch.nn.functional.pad(x, flat)

kernel_name = 'gated_mix__ssm_conv_s5__softmax_full_mha__prompt'

def setup_inputs():

    _w = (lambda a: (lambda t: t.to(torch.bfloat16) if t.is_floating_point() else t)(torch.as_tensor(a)))
    def _A_setup():
        B, S, D = 1, 2048, 576
        P = D
        Lambda_re = -0.5 * (lambda _x: torch.exp(torch.as_tensor(_x)))((lambda *s: torch.randn(*s, dtype=torch.bfloat16) * 0.4)(P))
        Lambda_im = (lambda *s: torch.randn(*s, dtype=torch.bfloat16) * 0.8)(P) * 1.0
        B_re = (lambda *s: torch.randn(*s, dtype=torch.bfloat16) * 0.8)(P, D) * (D ** -0.5)
        B_im = (lambda *s: torch.randn(*s, dtype=torch.bfloat16) * 0.8)(P, D) * (D ** -0.5)
        C_re = (lambda *s: torch.randn(*s, dtype=torch.bfloat16) * 0.8)(D, P) * (P ** -0.5)
        C_im = (lambda *s: torch.randn(*s, dtype=torch.bfloat16) * 0.8)(D, P) * (P ** -0.5)
        log_dt = (lambda *s: torch.randn(*s, dtype=torch.bfloat16) * 0.4)(P) * 0.3 - 2.0
        Dskip = (lambda *s: torch.randn(*s, dtype=torch.bfloat16) * 0.1)(D)
        return {
            "x": _w((lambda *s: torch.randn(*s, dtype=torch.bfloat16) * 0.05)(B, S, D)),
            "Lambda_re": _w(Lambda_re),
            "Lambda_im": _w(Lambda_im),
            "B_re": _w(B_re),
            "B_im": _w(B_im),
            "C_re": _w(C_re),
            "C_im": _w(C_im),
            "log_dt": _w(log_dt),
            "Dskip": _w(Dskip),
        }
    _A_in = _A_setup()

    def _B_setup():
        B, S, D = 1, 2048, 576
        return {
            "x": _w((lambda *s: torch.randn(*s, dtype=torch.bfloat16) * 0.05)(B, S, D)),
            "wqkv": _w((lambda *s: torch.randn(*s, dtype=torch.bfloat16) * 0.8)(D, 3 * D)),
            "wo": _w((lambda *s: torch.randn(*s, dtype=torch.bfloat16) * 0.05)(D, D)),
        }
    _B_in = _B_setup()

    return {
        "A_x": _A_in["x"],
        "A_Lambda_re": _A_in["Lambda_re"],
        "A_Lambda_im": _A_in["Lambda_im"],
        "A_B_re": _A_in["B_re"],
        "A_B_im": _A_in["B_im"],
        "A_C_re": _A_in["C_re"],
        "A_C_im": _A_in["C_im"],
        "A_log_dt": _A_in["log_dt"],
        "A_Dskip": _A_in["Dskip"],
        "B_x": _B_in["x"],
        "B_wqkv": _B_in["wqkv"],
        "B_wo": _B_in["wo"],
        "gate_w": _w((lambda *s: torch.randn(*s, dtype=torch.bfloat16) * 0.05)(576) * 16.0),
    }

def reference(A_x, A_Lambda_re, A_Lambda_im, A_B_re, A_B_im, A_C_re, A_C_im, A_log_dt, A_Dskip, B_x, B_wqkv, B_wo, gate_w):
    def _A_ref(x, Lambda_re, Lambda_im, B_re, B_im, C_re, C_im, log_dt, Dskip):
        Bsz, L, H = x.shape
        Lam = Lambda_re + 1j * Lambda_im
        Bmat = B_re + 1j * B_im
        Cmat = C_re + 1j * C_im
        dt = torch.exp(log_dt)
        Lam_bar = torch.exp(dt * Lam)
        B_bar = ((Lam_bar - 1.0) / Lam)[:, None] * Bmat
        Bu = torch.einsum("bld,pd->blp", x + 0j, B_bar)
        h = torch.zeros_like(Bu[:, 0, :])
        hs = []
        for t in range(L):
            h = Lam_bar[None, :] * h + Bu[:, t, :]
            hs.append(h)
        hseq = torch.stack(hs, 1)
        y = 2.0 * torch.einsum("blp,dp->bld", hseq, Cmat).real + x * Dskip[None, None, :]
        return y

    def _B_ref(x, wqkv, wo):
        B, S, D = x.shape
        H = 32; Dh = D // H
        qkv = (lambda x, *d: x.permute(*d))((x @ wqkv).reshape(B, S, 3, H, Dh), 2, 0, 3, 1, 4)
        q, k, v = qkv[0], qkv[1], qkv[2]
        scale = Dh ** -0.5
        scores = torch.einsum("bhqd,bhkd->bhqk", q, k) * scale
        p = _softmax(scores, axis=-1)
        o = torch.einsum("bhqk,bhkd->bhqd", p, v)
        return (lambda x, *d: x.permute(*d))(o, 0, 2, 1, 3).reshape(B, S, D) @ wo

    x = A_x
    g = _sigmoid((x * gate_w).sum(-1, keepdims=True))
    a = _A_ref(x, A_Lambda_re, A_Lambda_im, A_B_re, A_B_im, A_C_re, A_C_im, A_log_dt, A_Dskip)
    b = _B_ref(x, B_wqkv, B_wo)
    return g * a + (1 - g) * b
```

```python
import re


class Asm:
    def __init__(self):
        self.L = []

    def __call__(self, s=""):
        for ln in s.split("\n"):
            if ln.strip():
                t = ln.strip()
                self.L.append(t if t.endswith(":") else "    " + t)

    def label(self, n):
        self.L.append(n + ":")

    def raw(self, s):
        self.L.append(s)

    def text(self):
        return "\n".join(self.L) + "\n"


def vr(b, n=1):
    return f"v{b}" if n == 1 else f"v[{b}:{b+n-1}]"


def sr(b, n=1):
    return f"s{b}" if n == 1 else f"s[{b}:{b+n-1}]"


_REG = re.compile(r"^(-?\|?)([vsa])\[(\d+):(\d+)\]\|?$|^(-?\|?)([vsa])(\d+)\|?$")


def regs_of(op):
    op = op.strip()
    m = _REG.match(op)
    if m:
        if m.group(2):
            return {(m.group(2), i) for i in range(int(m.group(3)), int(m.group(4)) + 1)}
        return {(m.group(6), int(m.group(7)))}
    if op in ("vcc", "vcc_lo", "vcc_hi"):
        return {("s", "vcc")}
    if op in ("exec", "exec_lo", "exec_hi"):
        return {("s", "exec")}
    if op == "m0":
        return {("s", "m0")}
    return set()


_MODS = re.compile(r"\s(quad_perm|row_|wave_|offen|idxen|offset:|offset0|lds\b|sc0|sc1|nt\b|op_sel|neg_|bank_mask|"
                   r"bound_ctrl|dst_sel|dst_unused|src0_sel|src1_sel|clamp|mul:|div:|cbsz|blgp|abid|off\b|glc|vmcnt|lgkmcnt)")

TRANS = ("v_exp_f32", "v_log_f32", "v_rcp_f32", "v_rsq_f32", "v_sqrt_f32", "v_sin_f32", "v_cos_f32",
         "v_exp_f16", "v_rcp_iflag_f32")


class Ins:
    __slots__ = ("idx", "text", "op", "ops", "kind", "w", "r", "passes", "srcc", "srcab", "preds", "ws", "dpp", "lds",
                 "wide_store", "data")

    def __init__(self, idx, text):
        self.idx = idx
        self.text = text
        t = text.split(";")[0].strip()
        parts = t.split(None, 1)
        self.op = parts[0]
        rest = parts[1] if len(parts) > 1 else ""
        m = _MODS.search(rest)
        mods = rest[m.start():] if m else ""
        opnds = rest[:m.start()] if m else rest
        toks = [x.strip() for x in opnds.split(",")] if opnds.strip() else []
        self.ops = toks
        self.w, self.r = set(), set()
        self.passes = 0
        self.srcc, self.srcab = set(), set()
        self.preds = []
        self.ws = 1
        self.dpp = ("quad_perm" in rest) or ("row_" in rest) or ("wave_" in rest) or self.op.endswith("_dpp")
        self.lds = False
        self.wide_store = False
        self.data = set()
        op = self.op
        R = [regs_of(x) for x in toks]
        if op == "s_nop":
            self.kind = "nop"
            self.ws = int(toks[0], 0) + 1
        elif op.startswith("v_mfma"):
            self.kind = "mfma"
            self.passes = 8 if "32x32" in op else 4
            self.w = R[0]
            self.srcab = R[1] | R[2]
            self.srcc = R[3]
            self.r = self.srcab | self.srcc
        elif op.startswith("v_"):
            self.kind = "valu"
            o = op.replace("_e32", "").replace("_e64", "").replace("_dpp", "").replace("_sdwa", "")
            if o.startswith("v_cmp"):
                if len(toks) == 3:
                    self.w = R[0]
                    self.r = R[1] | R[2]
                else:
                    self.w = {("s", "vcc")}
                    self.r = R[0] | R[1]
            elif o.startswith("v_permlane") and "swap" in o:
                self.w = R[0] | R[1]
                self.r = R[0] | R[1]
            elif o in ("v_readfirstlane_b32", "v_readlane_b32"):
                self.w = R[0]
                self.r = set().union(*R[1:])
            elif o in ("v_add_co_u32", "v_sub_co_u32", "v_addc_co_u32", "v_subb_co_u32"):
                self.w = R[0] | R[1]
                self.r = set().union(*R[2:])
            else:
                self.w = R[0]
                self.r = set().union(*R[1:]) if len(R) > 1 else set()
                if o.startswith(("v_fmac", "v_mac", "v_dot2c", "v_pk_fmac")) or self.dpp:
                    self.r |= R[0]
                if o == "v_cndmask_b32" and len(toks) == 3:
                    self.r |= {("s", "vcc")}
        elif op.startswith("ds_"):
            self.kind = "ds"
            if op.startswith("ds_read") or op.startswith("ds_bpermute") or op.startswith("ds_swizzle") or \
                    op.startswith("ds_permute"):
                self.w = R[0]
                self.r = set().union(*R[1:]) if len(R) > 1 else set()
            else:
                self.r = set().union(*R) if R else set()
        elif op.startswith(("buffer_", "global_")):
            self.kind = "vmem"
            self.lds = " lds" in (" " + mods) or "_lds_" in op
            if op.startswith("buffer_wbl2") or op.startswith("buffer_inv"):
                pass
            elif "store" in op or "atomic" in op:
                self.r = set().union(*R)
                self.data = R[0] if op.startswith("buffer_") else R[1]
                if ("x4" in op) or ("x3" in op):
                    self.wide_store = True
                if "atomic" in op and ("sc0" in mods):
                    self.w = self.data
            elif self.lds:
                self.r = set().union(*R) | {("s", "m0")}
            else:
                self.w = R[0]
                self.r = set().union(*R[1:])
        elif op.startswith("s_"):
            self.kind = "salu"
            if op in ("s_waitcnt", "s_barrier", "s_endpgm", "s_branch", "s_sleep", "s_setprio") or \
                    op.startswith("s_cbranch"):
                pass
            elif op.startswith("s_cmp") or op.startswith("s_bitcmp"):
                self.r = set().union(*R) if R else set()
            elif op.startswith(("s_load", "s_memtime", "s_memrealtime", "s_getreg", "s_getpc")):
                self.w = R[0]
                self.r = set().union(*R[1:]) if len(R) > 1 else set()
            else:
                self.w = R[0]
                self.r = set().union(*R[1:]) if len(R) > 1 else set()
                if "saveexec" in op:
                    self.w = self.w | {("s", "exec")}
        else:
            self.kind = "other"


def check_hazards(text, verbose=True):
    ins, labels = [], {}
    for ln in text.split("\n"):
        t = ln.split(";")[0].strip()
        if not t or t.startswith("."):
            continue
        if t.endswith(":"):
            labels[t[:-1]] = len(ins)
            continue
        ins.append(Ins(len(ins), ln.strip()))
    n = len(ins)
    for i, x in enumerate(ins):
        nxt = True
        if x.op in ("s_branch", "s_endpgm"):
            nxt = False
        if nxt and i + 1 < n:
            ins[i + 1].preds.append(i)
        if x.op == "s_branch" or x.op.startswith("s_cbranch"):
            tgt = labels.get(x.ops[0])
            if tgt is not None and tgt < n:
                ins[tgt].preds.append(i)
    problems = []

    def need(p, c):
        k = 0
        vw = {r for r in p.w if r[0] in "va"}
        sw = {r for r in p.w if r[0] == "s"}
        if p.kind == "valu":
            if c.kind == "mfma" and vw & c.r:
                k = max(k, 2)
            if c.kind == "valu":
                o = c.op
                if p.op.replace("_e32", "").replace("_e64", "") in TRANS and vw & c.r and \
                        c.op.replace("_e32", "").replace("_e64", "") not in TRANS:
                    k = max(k, 1)
                if o.startswith(("v_readfirstlane", "v_readlane")) and vw & c.r:
                    k = max(k, 1)
                if (o.startswith("v_permlane") or c.dpp) and vw & c.r:
                    k = max(k, 2)
                if sw & c.r:
                    k = max(k, 4 if o.startswith(("v_readlane", "v_writelane")) else 2)
                if ("sdwa" in p.op or "op_sel" in p.text) and vw & (c.r | c.w) and not p.op.startswith("v_pk"):
                    k = max(k, 1)
                if p.op.startswith("v_dot") and vw & (c.r | c.w) and p.op != c.op:
                    k = max(k, 3)
                if p.op.startswith("v_dot") and p.op == c.op and len(c.ops) > 2 and \
                        vw & (regs_of(c.ops[1]) | regs_of(c.ops[2])):
                    k = max(k, 3)
            if c.kind == "vmem" and sw & c.r:
                k = max(k, 5)
            if p.op.startswith("v_dot") and c.kind in ("vmem", "ds", "mfma") and vw & c.r:
                k = max(k, 3)
        if p.kind == "mfma":
            big = p.passes == 8
            if c.kind == "mfma":
                if p.w & c.srcab:
                    k = max(k, 12 if big else 8)
                if p.w & c.srcc and not (p.w == c.srcc and p.passes == c.passes):
                    k = max(k, 10 if big else 6)
                if p.w & c.w and not (p.w == c.srcc) and not (p.w & c.srcc):
                    k = max(k, 10 if big else 6)
            elif c.kind in ("valu", "vmem", "ds"):
                if p.w & (c.r | c.w):
                    k = max(k, 12 if big else 8)
                if c.kind == "valu" and p.srcc & c.w:
                    k = max(k, 7 if big else 3)
        if p.kind == "salu" and ("s", "m0") in p.w and c.kind == "vmem" and c.lds:
            k = max(k, 1)
        if p.kind == "vmem" and p.wide_store and p.data & c.w:
            k = max(k, 2 if c.kind == "valu" else 1)
        return k

    MAXW = 13
    for c in ins:
        seen = set()
        stack = [(q, 0) for q in c.preds]
        while stack:
            q, dist = stack.pop()
            if (q, dist) in seen:
                continue
            seen.add((q, dist))
            p = ins[q]
            k = need(p, c)
            if k > dist:
                problems.append((p, c, k, dist))
            d2 = dist + p.ws
            if d2 < MAXW:
                for pp in p.preds:
                    stack.append((pp, d2))
    if verbose:
        for p, c, k, d in problems:
            print(f"HAZARD need {k} have {d}:\n   [{p.idx}] {p.text}\n   [{c.idx}] {c.text}")
    return problems
```

```python
import struct
from asmlib import Asm, vr, sr
from layout import *


def fhex(x):
    return hex(struct.unpack("<I", struct.pack("<f", x))[0])


def ldptr(a, sd, name):
    a(f"s_load_dwordx2 s[{sd}:{sd+1}], s[0:1], {KA[name]}")


def srd_tail(a, sd, size):
    a(f"s_mov_b32 s{sd+2}, {size}")
    a(f"s_mov_b32 s{sd+3}, 0x00020000")


SLOT = 36864
NSLOT = 4
LOOKAHEAD = 5


def k1_issue(a):
    for pp in range(4):
        a(f"s_add_u32 m0, s22, {pp*1024}")
        a(f"s_add_u32 s26, s23, {pp*9216}")
        a("buffer_load_dwordx4 v1, s[8:11], s26 offen lds")
    for pp in range(5):
        a(f"s_add_u32 m0, s25, {pp*1024}")
        a("s_nop 0")
        a(f"buffer_load_dwordx4 v{2+pp}, s[12:15], s24 offen lds")
    a("s_add_u32 s23, s23, 128")
    a("s_add_u32 s24, s24, 221184")
    a(f"s_add_u32 s22, s22, {SLOT}")
    a(f"s_add_u32 s25, s25, {SLOT}")
    a("s_add_u32 s27, s27, 1")
    a(f"s_cmp_eq_u32 s27, {NSLOT}")
    a(f"s_cselect_b32 s28, {SLOT*NSLOT}, 0")
    a("s_cselect_b32 s27, 0, s27")
    a("s_sub_u32 s22, s22, s28")
    a("s_sub_u32 s25, s25, s28")
    a("s_add_u32 s21, s21, 1")


def k1_loader(a):
    a.label("K1_LOADER")
    a("s_sub_u32 s3, s3, 4")
    a("v_lshrrev_b32 v2, 3, v0")
    a("v_and_b32 v3, 7, v0")
    a("v_xor_b32 v3, v3, v2")
    a("v_lshlrev_b32 v3, 4, v3")
    a("s_lshl_b32 s20, s6, 7")
    a("s_lshl_b32 s21, s3, 5")
    a("s_add_u32 s20, s20, s21")
    a("v_add_u32 v2, s20, v2")
    a("v_mul_u32_u24 v2, 1152, v2")
    a("v_add_u32 v1, v2, v3")
    a("s_mul_i32 s20, s3, 320")
    a("s_mul_i32 s21, s7, 288")
    for pp in range(5):
        d = 2 + pp
        a(f"v_add_u32 v8, s20, v0")
        if pp:
            a(f"v_add_u32 v8, {64*pp}, v8")
        a("v_mul_u32_u24 v9, 3641, v8")
        a("v_lshrrev_b32 v9, 16, v9")
        a("v_mul_u32_u24 v10, 18, v9")
        a("v_sub_u32 v10, v8, v10")
        a("v_and_b32 v11, 4, v9")
        a("v_and_b32 v12, 8, v9")
        a("v_and_b32 v9, 0xfffffff3, v9")
        a("v_lshl_or_b32 v9, v11, 1, v9")
        a("v_lshrrev_b32 v12, 1, v12")
        a("v_or_b32 v9, v9, v12")
        a("v_mul_u32_u24 v9, 3456, v9")
        a("v_lshl_add_u32 v9, v10, 4, v9")
        a(f"v_add_u32 v{d}, s21, v9")
    a("s_lshl_b32 s22, s3, 12")
    a("s_mov_b32 s23, 0")
    a("s_mov_b32 s24, 0")
    a("s_mul_i32 s25, s3, 5120")
    a("s_add_u32 s25, s25, 16384")
    a("s_mov_b32 s27, 0")
    a("s_mov_b32 s21, 0")
    a("s_waitcnt lgkmcnt(0)")
    a.label("K1_LD_PRO")
    k1_issue(a)
    a("s_cmp_lt_u32 s21, 4")
    a("s_cbranch_scc1 K1_LD_PRO")
    a("s_waitcnt vmcnt(27)")
    a("s_barrier")
    a("s_waitcnt vmcnt(18)")
    a("s_barrier")
    a("s_mov_b32 s20, 2")
    a.label("K1_LD_LOOP")
    a("s_cmp_eq_u32 s20, 8")
    a("s_cbranch_scc1 K1_LD_LAST")
    a("s_waitcnt vmcnt(9)")
    a("s_barrier")
    a("s_cmp_gt_u32 s21, 8")
    a("s_cbranch_scc1 K1_LD_SKIP")
    k1_issue(a)
    a.label("K1_LD_SKIP")
    a("s_add_u32 s20, s20, 1")
    a("s_branch K1_LD_LOOP")
    a.label("K1_LD_LAST")
    a("s_waitcnt vmcnt(0)")
    a("s_barrier")
    a("s_endpgm")


ACC = 64
WF = 136
XFR = 172


def acc(j, tt):
    return ACC + 8 * j + 4 * tt


def k1_reads(a, t):
    s, j = divmod(t, 9)
    if j == 0:
        for tt in range(2):
            a(f"ds_read_b128 {vr(XFR + 8*s + 4*tt, 4)}, v{6+s} offset:{tt*2048}")
    if j < 8:
        col = 72 * (j >> 1) + (40 if j & 1 else 0)
        base = 8
    else:
        col = 0
        base = 9
    off = s * 9216 + col
    a(f"ds_read_b64_tr_b16 {vr(WF + 4*j, 2)}, v{base} offset:{off}")
    a(f"ds_read_b64_tr_b16 {vr(WF + 4*j + 2, 2)}, v{base} offset:{off + 2304}")


def k1_mainloop(a, name, vmode):
    Lk = LOOKAHEAD
    a("s_barrier")
    for r in range(4):
        a(f"v_mov_b32 v{6+r}, v{2+r}")
    a(f"s_mov_b32 s21, {SLOT}")
    a("s_mov_b32 s20, 0")
    for t in range(Lk):
        k1_reads(a, t)
    a.label(f"{name}_LOOP")
    for u in range(18):
        n = sum(2 + (2 if (t % 9) == 0 else 0) for t in range(u + 1, u + Lk))
        a(f"s_waitcnt lgkmcnt({n})")
        s, j = divmod(u, 9)
        for tt in range(2):
            x = vr(XFR + 8 * s + 4 * tt, 4)
            w = vr(WF + 4 * j, 4)
            d = vr(acc(j, tt), 4)
            if vmode:
                a(f"v_mfma_f32_16x16x32_bf16 {d}, {x}, {w}, {d}")
            else:
                a(f"v_mfma_f32_16x16x32_bf16 {d}, {w}, {x}, {d}")
        t = u + Lk
        if t == 18:
            a("s_cmp_eq_u32 s20, 8")
            a(f"s_cbranch_scc1 {name}_NOBAR")
            a("s_barrier")
            a.label(f"{name}_NOBAR")
            for r in range(4):
                a(f"v_add_u32 v{6+r}, s21, v{2+r}")
            a(f"s_add_u32 s21, s21, {SLOT}")
            a(f"s_cmp_eq_u32 s21, {SLOT*NSLOT}")
            a("s_cselect_b32 s21, 0, s21")
        k1_reads(a, t % 18)
    a("s_add_u32 s20, s20, 1")
    a("s_cmp_lt_u32 s20, 9")
    a(f"s_cbranch_scc1 {name}_LOOP")
    a("s_waitcnt lgkmcnt(0)")


def k1_consumer(a):
    a("v_and_b32 v10, 15, v0")
    a("v_lshrrev_b32 v11, 4, v0")
    a("v_and_b32 v12, 7, v10")
    a("v_xor_b32 v12, v12, v11")
    a("v_lshlrev_b32 v12, 4, v12")
    a("v_lshl_add_u32 v12, v10, 7, v12")
    a("s_lshl_b32 s20, s3, 12")
    a("v_add_u32 v2, s20, v12")
    a("v_xor_b32 v3, 64, v2")
    a("v_lshrrev_b32 v12, 1, v11")
    a("v_lshlrev_b32 v12, 4, v12")
    a("v_and_b32 v13, 1, v11")
    a("v_lshl_add_u32 v12, v13, 2, v12")
    a("v_lshrrev_b32 v13, 2, v10")
    a("v_add_u32 v12, v12, v13")
    a("v_mul_u32_u24 v12, 288, v12")
    a("v_add_u32 v12, 16384, v12")
    a("v_and_b32 v13, 3, v0")
    a("v_lshl_add_u32 v4, v13, 3, v12")
    a("v_mul_u32_u24 v13, 72, v13")
    a("v_add3_u32 v5, v13, v12, 32")
    for r in range(72):
        a(f"v_mov_b32 v{ACC+r}, 0")
    a("s_lshl_b32 s30, s6, 2")
    a("s_add_u32 s30, s30, s3")
    a("s_and_b32 s31, s7, 3")
    a("s_lshl_b32 s31, s31, 9")
    a("s_add_u32 s30, s30, s31")
    a("s_cmp_ge_u32 s7, 8")
    a("s_cbranch_scc1 K1_V")
    k1_mainloop(a, "K1_QK", False)
    a("s_cmp_ge_u32 s7, 4")
    a(f"s_mov_b32 s32, {QBLOB}")
    a(f"s_cselect_b32 s32, {KVBLOB}, s32")
    a(f"s_cselect_b32 s33, {OFF_KV}, {OFF_QF}")
    a(f"s_cselect_b32 s34, 1.0, {fhex(QSCALE)}")
    a("s_mul_i32 s35, s30, s32")
    a("s_add_u32 s35, s35, s33")
    a("s_lshl_b32 s36, s32, 6")
    a("v_lshlrev_b32 v2, 4, v0")
    a("v_lshrrev_b32 v3, 4, v0")
    a("s_lshl_b32 s37, s36, 1")
    a("v_mul_lo_u32 v3, v3, s37")
    a("v_and_b32 v4, 15, v0")
    a("v_lshl_add_u32 v3, v4, 2, v3")
    a("s_mov_b32 s38, s35")
    for j in range(8):
        t = 8 + 4 * (j & 1)
        for tt in range(2):
            for r in range(4):
                a(f"v_mul_f32 v{acc(j,tt)+r}, s34, v{acc(j,tt)+r}")
        for tt in range(2):
            b = acc(j, tt)
            a(f"v_cvt_pk_bf16_f32 v{t+2*tt}, v{b}, v{b+1}")
            a(f"v_cvt_pk_bf16_f32 v{t+2*tt+1}, v{b+2}, v{b+3}")
        a("s_nop 1")
        a(f"v_permlane16_swap_b32 v{t}, v{t+2}")
        a(f"v_permlane16_swap_b32 v{t+1}, v{t+3}")
        a(f"buffer_store_dwordx4 {vr(t,4)}, v2, s[16:19], s38 offen")
        a("s_add_u32 s38, s38, s36")
    for tt in range(2):
        b = acc(8, tt)
        for r in range(4):
            a(f"v_mul_f32 v{b+r}, s34, v{b+r}")
        a(f"v_cvt_pk_bf16_f32 v{16+2*tt}, v{b}, v{b+1}")
        a(f"v_cvt_pk_bf16_f32 v{17+2*tt}, v{b+2}, v{b+3}")
    a("s_add_u32 s38, s35, s36")
    for tt in range(2):
        a(f"buffer_store_dword v{16+2*tt}, v3, s[16:19], s35 offen offset:{1024+64*tt}")
        a(f"buffer_store_dword v{17+2*tt}, v3, s[16:19], s38 offen offset:{1024+64*tt}")
    a("s_endpgm")
    a.label("K1_V")
    k1_mainloop(a, "K1_VV", True)
    a(f"s_mul_i32 s35, s30, {KVBLOB}")
    a(f"s_add_u32 s35, s35, {OFF_KV}")
    HS = 64 * KVBLOB
    a("v_lshrrev_b32 v3, 4, v0")
    a("v_mul_u32_u24 v3, 304, v3")
    a("v_and_b32 v4, 15, v0")
    a("v_lshl_add_u32 v2, v4, 4, v3")
    a("v_add_u32 v2, 1152, v2")
    a("v_lshrrev_b32 v5, 1, v4")
    a(f"s_mov_b32 s36, {HS}")
    a("v_mul_lo_u32 v5, v5, s36")
    a("v_and_b32 v6, 1, v4")
    a("v_lshl_add_u32 v5, v6, 4, v5")
    a("v_add_u32 v3, v3, v5")
    a(f"v_add_u32 v3, {1152 + 256}, v3")
    a("v_and_b32 v6, 31, v0")
    a("v_lshrrev_b32 v7, 2, v6")
    a("v_mul_lo_u32 v7, v7, s36")
    a("v_and_b32 v6, 3, v6")
    a("v_mul_u32_u24 v6, 304, v6")
    a("v_add_u32 v4, v6, v7")
    a(f"v_add_u32 v4, {1152 + 288}, v4")
    for r in range(4):
        a(f"v_mov_b32 v{20+r}, 0x3f803f80")
    a("s_mov_b32 s38, s35")
    for j in range(9):
        t = 8 + 4 * (j & 1)
        for tt in range(2):
            b = acc(j, tt)
            a(f"v_cvt_pk_bf16_f32 v{t+2*tt}, v{b}, v{b+1}")
            a(f"v_cvt_pk_bf16_f32 v{t+2*tt+1}, v{b+2}, v{b+3}")
        a("s_nop 1")
        a(f"v_permlane32_swap_b32 v{t}, v{t+2}")
        a(f"v_permlane32_swap_b32 v{t+1}, v{t+3}")
        if j < 8:
            a(f"buffer_store_dwordx4 {vr(t,4)}, v2, s[16:19], s38 offen")
            a("s_add_u32 s38, s38, s36")
        else:
            a(f"buffer_store_dwordx4 {vr(t,4)}, v3, s[16:19], s35 offen")
    a("buffer_store_dwordx4 v[20:23], v4, s[16:19], s35 offen")
    a("s_endpgm")


def lam_calc(a, lr, li, ldt, o_re, o_im, t):
    a(f"v_mul_f32 v{t}, {fhex(LOG2E)}, v{ldt}")
    a(f"v_exp_f32 v{t}, v{t}")
    a("s_nop 0")
    a(f"v_cvt_pk_bf16_f32 v{t}, v{t}, v{t}")
    a(f"v_lshlrev_b32 v{t}, 16, v{t}")
    a(f"v_mul_f32 v{t+1}, v{t}, v{lr}")
    a(f"v_mul_f32 v{t+2}, v{t}, v{li}")
    a(f"v_mul_f32 v{t+1}, {fhex(LOG2E)}, v{t+1}")
    a(f"v_mul_f32 v{t+2}, 0.15915494, v{t+2}")
    a(f"v_exp_f32 v{t+1}, v{t+1}")
    a(f"v_fract_f32 v{t+2}, v{t+2}")
    a(f"v_cos_f32 v{t+3}, v{t+2}")
    a(f"v_sin_f32 v{t+2}, v{t+2}")
    a("s_nop 0")
    a(f"v_mul_f32 v{o_re}, v{t+1}, v{t+3}")
    a(f"v_mul_f32 v{o_im}, v{t+1}, v{t+2}")


def k1_prep(a):
    a.label("K1_PREP")
    a("s_sub_u32 s4, s2, 192")
    a("s_lshl_b32 s4, s4, 3")
    a("s_add_u32 s4, s4, s3")
    ldptr(a, 16, "ws")
    srd_tail(a, 16, WS_REC)
    a("v_and_b32 v1, 31, v0")
    a("v_lshrrev_b32 v2, 5, v0")
    a("v_lshlrev_b32 v3, 4, v0")
    a("s_cmp_lt_u32 s4, 64")
    a("s_cbranch_scc1 K1_PXF")
    a("s_cmp_lt_u32 s4, 208")
    a("s_cbranch_scc1 K1_PCF")
    a("s_cmp_lt_u32 s4, 280")
    a("s_cbranch_scc1 K1_PBF")
    a("s_cmp_lt_u32 s4, 442")
    a("s_cbranch_scc1 K1_PWO")
    a("s_cmp_lt_u32 s4, 451")
    a("s_cbranch_scc1 K1_PLAM")
    a("s_endpgm")

    a.label("K1_PXF")
    ldptr(a, 8, "A_x")
    ldptr(a, 12, "gate_w")
    srd_tail(a, 8, SZ_X)
    srd_tail(a, 12, SZ_VEC)
    a("v_lshrrev_b32 v4, 2, v1")
    a("v_and_b32 v4, 1, v4")
    a("v_lshlrev_b32 v4, 4, v4")
    a("v_lshrrev_b32 v5, 3, v1")
    a("v_lshl_add_u32 v4, v5, 2, v4")
    a("v_and_b32 v5, 3, v1")
    a("v_add_u32 v4, v4, v5")
    a("s_lshl_b32 s5, s4, 5")
    a("v_add_u32 v4, s5, v4")
    a("v_mul_u32_u24 v5, 1152, v4")
    a("v_lshl_add_u32 v5, v2, 4, v5")
    a("v_lshlrev_b32 v6, 4, v2")
    a("v_mov_b32 v7, 0")
    a("s_mul_i32 s6, s4, 36864")
    a(f"s_add_u32 s6, s6, {OFF_XF}")
    a("s_mov_b32 s7, 0")
    a("s_waitcnt lgkmcnt(0)")
    a.label("K1_PXF_LOOP")
    for i in range(18):
        a(f"buffer_load_dwordx4 {vr(16+4*i,4)}, v5, s[8:11], s7 offen offset:{32*i}")
    for i in range(18):
        a(f"buffer_load_dwordx4 {vr(88+4*i,4)}, v6, s[12:15], s7 offen offset:{32*i}")
    for i in range(18):
        a("s_waitcnt vmcnt(35)")
        a(f"buffer_store_dwordx4 {vr(16+4*i,4)}, v3, s[16:19], s6 offen")
        a("s_add_u32 s6, s6, 1024")
    a("s_waitcnt vmcnt(18)")
    for i in range(18):
        for r in range(4):
            a(f"v_dot2_f32_bf16 v7, v{16+4*i+r}, v{88+4*i+r}, v7")
    a("s_add_u32 s7, s7, 576")
    a("s_cmp_lt_u32 s7, 1152")
    a("s_cbranch_scc1 K1_PXF_LOOP")
    a("s_nop 2")
    a("v_mov_b32 v8, v7")
    a("s_nop 1")
    a("v_permlane32_swap_b32 v7, v8")
    a("v_add_f32 v7, v7, v8")
    a(f"v_mul_f32 v7, {fhex(-LOG2E)}, v7")
    a("v_exp_f32 v7, v7")
    a("s_nop 0")
    a("v_add_f32 v7, 1.0, v7")
    a("v_rcp_f32 v7, v7")
    a("v_lshlrev_b32 v4, 2, v4")
    a(f"s_mov_b32 s6, {OFF_G}")
    a("buffer_store_dword v7, v4, s[16:19], s6 offen")
    a("s_endpgm")

    a.label("K1_PCF")
    a("s_sub_u32 s4, s4, 64")
    a("s_lshr_b32 s5, s4, 1")
    a("s_and_b32 s6, s4, 1")
    ldptr(a, 8, "C_re")
    ldptr(a, 12, "C_im")
    ldptr(a, 20, "L_re")
    ldptr(a, 24, "L_im")
    ldptr(a, 28, "log_dt")
    srd_tail(a, 8, SZ_SQ)
    srd_tail(a, 12, SZ_SQ)
    srd_tail(a, 20, SZ_VEC)
    srd_tail(a, 24, SZ_VEC)
    srd_tail(a, 28, SZ_VEC)
    a("s_lshl_b32 s7, s5, 4")
    a("v_lshlrev_b32 v4, 3, v2")
    a("s_mul_i32 s32, s6, 288")
    a("v_add_u32 v5, s32, v1")
    a("v_mul_u32_u24 v5, 1152, v5")
    a("v_add_u32 v5, v5, v4")
    a("s_waitcnt lgkmcnt(0)")
    a("buffer_load_dwordx2 v[8:9], v4, s[20:23], s7 offen")
    a("buffer_load_dwordx2 v[10:11], v4, s[24:27], s7 offen")
    a("buffer_load_dwordx2 v[12:13], v4, s[28:31], s7 offen")
    a("s_mov_b32 s33, s7")
    for dt in range(9):
        a(f"buffer_load_dwordx2 {vr(64+4*dt,2)}, v5, s[8:11], s33 offen")
        a(f"buffer_load_dwordx2 {vr(66+4*dt,2)}, v5, s[12:15], s33 offen")
        a(f"s_add_u32 s33, s33, {32*1152}")
    a("s_waitcnt vmcnt(18)")
    for i in range(4):
        src = i >> 1
        for k, base in enumerate((8, 10, 12)):
            if i & 1:
                a(f"v_and_b32 v{16+k}, 0xffff0000, v{base+src}")
            else:
                a(f"v_lshlrev_b32 v{16+k}, 16, v{base+src}")
        lam_calc(a, 16, 17, 18, 20, 21, 24)
        a("v_add_f32 v20, -1.0, v20")
        a("v_mul_f32 v22, v16, v16")
        a("v_fmac_f32 v22, v17, v17")
        a("v_rcp_f32 v22, v22")
        a("v_mul_f32 v23, v20, v16")
        a("v_fmac_f32 v23, v21, v17")
        a("v_mul_f32 v24, v21, v16")
        a("v_fma_f32 v24, -v20, v17, v24")
        a("v_add_f32 v22, v22, v22")
        a(f"v_mul_f32 v{32+2*i}, v23, v22")
        a(f"v_mul_f32 v{33+2*i}, v24, v22")
    a("s_mul_i32 s33, s6, 9")
    a(f"s_mul_i32 s33, s33, {72*1024}")
    a("s_lshl_b32 s34, s5, 10")
    a("s_add_u32 s33, s33, s34")
    a(f"s_add_u32 s33, s33, {OFF_CF}")
    for dt in range(9):
        a(f"s_waitcnt vmcnt({16 - 2*dt + dt})")
        o = 40 + 4 * (dt & 1)
        for i in range(4):
            cr, ci = 64 + 4 * dt + (i >> 1), 66 + 4 * dt + (i >> 1)
            if i & 1:
                a(f"v_and_b32 v16, 0xffff0000, v{cr}")
                a(f"v_and_b32 v17, 0xffff0000, v{ci}")
            else:
                a(f"v_lshlrev_b32 v16, 16, v{cr}")
                a(f"v_lshlrev_b32 v17, 16, v{ci}")
            a(f"v_mul_f32 v18, v16, v{32+2*i}")
            a(f"v_fma_f32 v18, -v17, v{33+2*i}, v18")
            a(f"v_mul_f32 v19, v16, v{33+2*i}")
            a(f"v_fmac_f32 v19, v17, v{32+2*i}")
            a(f"v_cvt_pk_bf16_f32 v{o+i}, v18, -v19")
        a(f"buffer_store_dwordx4 {vr(o,4)}, v3, s[16:19], s33 offen")
        a(f"s_add_u32 s33, s33, {72*1024}")
    a("s_endpgm")

    a.label("K1_PBF")
    a("s_sub_u32 s4, s4, 208")
    a("s_lshr_b32 s5, s4, 1")
    a("s_and_b32 s6, s4, 1")
    ldptr(a, 8, "B_re")
    ldptr(a, 12, "B_im")
    srd_tail(a, 8, SZ_SQ)
    a("s_waitcnt lgkmcnt(0)")
    a("s_and_b32 s7, s5, 1")
    a("s_cmp_eq_u32 s7, 1")
    a("s_cselect_b32 s8, s12, s8")
    a("s_cselect_b32 s9, s13, s9")
    a("s_lshr_b32 s7, s5, 1")
    a("s_lshl_b32 s7, s7, 5")
    a("v_add_u32 v4, s7, v1")
    a("v_mul_u32_u24 v4, 1152, v4")
    a("v_lshl_add_u32 v4, v2, 4, v4")
    a("s_mul_i32 s7, s6, 576")
    for i in range(18):
        a(f"buffer_load_dwordx4 {vr(16+4*i,4)}, v4, s[8:11], s7 offen offset:{32*i}")
    a("s_mul_i32 s20, s5, 36864")
    a("s_mul_i32 s21, s6, 18432")
    a("s_add_u32 s20, s20, s21")
    a(f"s_add_u32 s20, s20, {OFF_BF}")
    for i in range(18):
        a("s_waitcnt vmcnt(17)")
        a(f"buffer_store_dwordx4 {vr(16+4*i,4)}, v3, s[16:19], s20 offen")
        a("s_add_u32 s20, s20, 1024")
    a("s_endpgm")

    a.label("K1_PWO")
    a("s_sub_u32 s4, s4, 280")
    a("s_mul_i32 s5, s4, 7282")
    a("s_lshr_b32 s5, s5, 16")
    a("s_mul_i32 s6, s5, 9")
    a("s_sub_u32 s6, s4, s6")
    ldptr(a, 8, "wo")
    srd_tail(a, 8, SZ_SQ)
    a("s_lshl_b32 s7, s5, 5")
    a("v_add_u32 v4, s7, v1")
    a("v_lshlrev_b32 v4, 1, v4")
    a("s_mul_i32 s20, s5, 36864")
    a("s_lshl_b32 s21, s6, 12")
    a("s_add_u32 s20, s20, s21")
    a(f"s_add_u32 s20, s20, {OFF_WOF}")
    a("s_cmp_eq_u32 s6, 8")
    a("s_cbranch_scc1 K1_PWO_REM")
    a("v_mul_u32_u24 v5, 4608, v2")
    a("v_add_u32 v4, v4, v5")
    a("s_waitcnt lgkmcnt(0)")
    tab = [0, 1, 2, 3, 8, 9, 10, 11]
    for i in range(4):
        a(f"s_mul_i32 s21, s6, {72*1152}")
        a(f"s_add_u32 s21, s21, {(18*i + 2*(i&1))*1152}")
        for e in range(8):
            a(f"s_add_u32 s22, s21, {tab[e]*1152}")
            a(f"buffer_load_ushort v{16+8*i+e}, v4, s[8:11], s22 offen")
    a("s_branch K1_PWO_PACK")
    a.label("K1_PWO_REM")
    a(f"v_mul_u32_u24 v5, {72*1152}, v2")
    a("v_add_u32 v4, v4, v5")
    a("s_waitcnt lgkmcnt(0)")
    tab = [16, 17, 18, 19, 52, 53, 54, 55]
    for i in range(4):
        for e in range(8):
            a(f"s_mov_b32 s22, {(144*i + tab[e])*1152}")
            a(f"buffer_load_ushort v{16+8*i+e}, v4, s[8:11], s22 offen")
    a.label("K1_PWO_PACK")
    a("s_waitcnt vmcnt(0)")
    for i in range(4):
        for r in range(4):
            a(f"v_lshl_or_b32 v{48+4*i+r}, v{16+8*i+2*r+1}, 16, v{16+8*i+2*r}")
    for i in range(4):
        a(f"buffer_store_dwordx4 {vr(48+4*i,4)}, v3, s[16:19], s20 offen offset:{1024*i}")
    a("s_endpgm")

    a.label("K1_PLAM")
    a("s_sub_u32 s4, s4, 442")
    ldptr(a, 20, "L_re")
    ldptr(a, 24, "L_im")
    ldptr(a, 28, "log_dt")
    srd_tail(a, 20, SZ_VEC)
    srd_tail(a, 24, SZ_VEC)
    srd_tail(a, 28, SZ_VEC)
    a("s_lshl_b32 s5, s4, 6")
    a("v_add_u32 v4, s5, v0")
    a("v_lshlrev_b32 v5, 1, v4")
    a("s_waitcnt lgkmcnt(0)")
    a("buffer_load_ushort v16, v5, s[20:23], 0 offen")
    a("buffer_load_ushort v17, v5, s[24:27], 0 offen")
    a("buffer_load_ushort v18, v5, s[28:31], 0 offen")
    a("s_waitcnt vmcnt(0)")
    for k in range(3):
        a(f"v_lshlrev_b32 v{16+k}, 16, v{16+k}")
    lam_calc(a, 16, 17, 18, 20, 21, 24)
    a("v_lshlrev_b32 v5, 3, v4")
    a(f"s_mov_b32 s6, {OFF_LAM}")
    a("buffer_store_dwordx2 v[20:21], v5, s[16:19], s6 offen")
    a("v_and_b32 v6, 15, v0")
    a("s_lshl_b32 s5, s4, 4")
    a("v_add_u32 v6, s5, v6")
    a("v_lshlrev_b32 v6, 7, v6")
    a("v_mov_b32 v7, 0")
    a(f"s_mov_b32 s6, {OFF_FLAG}")
    a("buffer_store_dword v7, v6, s[16:19], s6 offen")
    a("s_endpgm")


def gen_k1(a):
    a.label("k1_kernel")
    a("s_cmp_ge_u32 s2, 256")
    a("s_cbranch_scc1 K1_END")
    a("v_lshrrev_b32 v1, 6, v0")
    a("v_and_b32 v0, 63, v0")
    a("v_readfirstlane_b32 s3, v1")
    a("s_cmp_ge_u32 s2, 192")
    a("s_cbranch_scc1 K1_PREP")
    ldptr(a, 8, "A_x")
    ldptr(a, 12, "wqkv")
    ldptr(a, 16, "ws")
    srd_tail(a, 8, SZ_X)
    srd_tail(a, 12, SZ_WQKV)
    srd_tail(a, 16, WS_REC)
    a("s_and_b32 s4, s2, 7")
    a("s_lshr_b32 s5, s2, 3")
    a("s_lshr_b32 s6, s4, 1")
    a("s_lshl_b32 s6, s6, 2")
    a("s_and_b32 s7, s5, 3")
    a("s_add_u32 s6, s6, s7")
    a("s_and_b32 s7, s4, 1")
    a("s_mul_i32 s7, s7, 6")
    a("s_lshr_b32 s5, s5, 2")
    a("s_add_u32 s7, s7, s5")
    a("s_cmp_ge_u32 s3, 4")
    a("s_cbranch_scc1 K1_LOADER")
    a("s_waitcnt lgkmcnt(0)")
    k1_consumer(a)
    k1_loader(a)
    k1_prep(a)
    a.label("K1_END")
    a("s_endpgm")
```

```python
from asmlib import Asm, vr, sr
from layout import *
from k1 import fhex, ldptr, srd_tail

QM, QR, NEGM, S0, S1, O, PB = 4, 8, 16, 32, 48, 64, 80
KM = (88, 92)
KR = (96, 100)
V0, V1 = 104, 108
UNROLL = 8
NROUND = 19
LDS_K2 = NROUND * 8 * 1024


def mf(a, d, x, y, c):
    cs = c if isinstance(c, str) else vr(c, 16)
    a(f"v_mfma_f32_32x32x16_bf16 {vr(d,16)}, {vr(x,4)}, {vr(y,4)}, {cs}")


def k2_body(a, u):
    cur = S0 if (u & 1) == 0 else S1
    nxt = S1 if (u & 1) == 0 else S0
    kb = (u + 1) & 1
    a("s_waitcnt lgkmcnt(2)")
    mf(a, nxt, KM[kb], QM, NEGM)
    for i in range(8):
        a(f"v_exp_f32 v{cur+i}, v{cur+i}")
    mf(a, nxt, KR[kb], QR, nxt)
    for i in range(4):
        a(f"v_cvt_pk_bf16_f32 v{PB+i}, v{cur+2*i}, v{cur+2*i+1}")
    a(f"ds_read_b128 {vr(KM[u&1],4)}, v1 offset:{(u+2)*KVBLOB}")
    a(f"ds_read_b32 v{KR[u&1]}, v2 offset:{(u+2)*KVBLOB}")
    a("s_waitcnt lgkmcnt(3)")
    mf(a, O, V0, PB, O)
    for i in range(8, 16):
        a(f"v_exp_f32 v{cur+i}, v{cur+i}")
    for i in range(4, 8):
        a(f"v_cvt_pk_bf16_f32 v{PB+i}, v{cur+2*i}, v{cur+2*i+1}")
    a(f"ds_read_b128 {vr(V0,4)}, v3 offset:{(u+1)*KVBLOB}")
    a("s_waitcnt lgkmcnt(3)")
    mf(a, O, V1, PB + 4, O)
    a(f"ds_read_b128 {vr(V1,4)}, v3 offset:{(u+1)*KVBLOB + 608}")


def k2_addr(a):
    a("v_lshlrev_b32 v1, 4, v0")
    a("v_and_b32 v12, 31, v0")
    a("v_lshlrev_b32 v2, 2, v12")
    a("v_add_u32 v2, 1024, v2")
    a("v_min_u32 v3, 18, v12")
    a("v_lshlrev_b32 v3, 4, v3")
    a("v_lshrrev_b32 v13, 5, v0")
    a("v_mul_u32_u24 v13, 304, v13")
    a("v_add3_u32 v3, v3, v13, s30")


def gen_k2(a):
    a.label("k2_kernel")
    a("s_cmp_ge_u32 s2, 256")
    a("s_cbranch_scc1 K2_END")
    ldptr(a, 8, "ws")
    srd_tail(a, 8, WS_REC)
    a("v_lshrrev_b32 v1, 6, v0")
    a("v_and_b32 v0, 63, v0")
    a("v_readfirstlane_b32 s3, v1")
    a("s_and_b32 s4, s2, 7")
    a("s_lshl_b32 s4, s4, 2")
    a("s_lshr_b32 s5, s2, 3")
    a("s_and_b32 s6, s5, 3")
    a("s_add_u32 s4, s4, s6")
    a("s_lshr_b32 s5, s2, 5")
    a("s_lshl_b32 s5, s5, 3")
    a("s_add_u32 s5, s5, s3")
    a("s_lshl_b32 s6, s4, 6")
    a("s_add_u32 s6, s6, s5")
    a(f"s_mul_i32 s6, s6, {QBLOB}")
    a(f"s_mul_i32 s7, s4, {64*KVBLOB}")
    a("s_lshl_b32 s20, s3, 10")
    a("s_add_u32 s7, s7, s20")
    a(f"s_add_u32 s7, s7, {OFF_KV}")
    a("s_mov_b32 s30, 1152")
    k2_addr(a)
    a("v_lshlrev_b32 v14, 2, v12")
    a("s_waitcnt lgkmcnt(0)")
    a(f"buffer_load_dwordx4 {vr(QM,4)}, v1, s[8:11], s6 offen")
    a(f"buffer_load_dword v{QR}, v14, s[8:11], s6 offen offset:1024")
    for r in range(NROUND):
        a("s_mov_b32 m0, s20")
        a("s_add_u32 s20, s20, 8192")
        a("buffer_load_dwordx4 v1, s[8:11], s7 offen lds")
        a("s_add_u32 s7, s7, 8192")
    for r in range(1, 4):
        a(f"v_mov_b32 v{QR+r}, 0")
        a(f"v_mov_b32 v{KR[0]+r}, 0")
        a(f"v_mov_b32 v{KR[1]+r}, 0")
    for r in range(16):
        a(f"v_mov_b32 v{NEGM+r}, 0")
    a("s_mov_b32 s22, 0")
    a(f"s_waitcnt vmcnt({NROUND-2})")
    a("v_cmp_gt_u32 vcc, 32, v0")
    a("s_nop 1")
    a(f"v_cndmask_b32 v{QR}, 0, v{QR}, vcc")
    a("s_barrier")
    a.label("K2_START")
    for r in range(16):
        a(f"v_mov_b32 v{O+r}, 0")
    a(f"ds_read_b128 {vr(KM[0],4)}, v1")
    a(f"ds_read_b32 v{KR[0]}, v2")
    a("s_waitcnt lgkmcnt(0)")
    mf(a, S0, KM[0], QM, NEGM)
    mf(a, S0, KR[0], QR, S0)
    a(f"ds_read_b128 {vr(KM[1],4)}, v1 offset:{KVBLOB}")
    a(f"ds_read_b32 v{KR[1]}, v2 offset:{KVBLOB}")
    a(f"ds_read_b128 {vr(V0,4)}, v3")
    a(f"ds_read_b128 {vr(V1,4)}, v3 offset:608")
    a("s_mov_b32 s21, 0")
    a("s_nop 6")
    a.label("K2_LOOP")
    for u in range(UNROLL):
        if u == 4:
            a("s_cmp_lg_u32 s22, 0")
            a("s_cbranch_scc1 K2_NOBAR")
            a("s_cmp_eq_u32 s21, 0")
            a("s_cbranch_scc0 K2_NOB1")
            a(f"s_waitcnt vmcnt({NROUND-8})")
            a("s_barrier")
            a.label("K2_NOB1")
            a("s_cmp_eq_u32 s21, 2")
            a("s_cbranch_scc0 K2_NOBAR")
            a("s_waitcnt vmcnt(0)")
            a("s_barrier")
            a.label("K2_NOBAR")
        k2_body(a, u)
    for r in (1, 2, 3):
        a(f"v_add_u32 v{r}, {UNROLL*KVBLOB}, v{r}")
    a("s_add_u32 s21, s21, 1")
    a(f"s_cmp_lt_u32 s21, {64//UNROLL}")
    a("s_cbranch_scc1 K2_LOOP")
    a("s_waitcnt lgkmcnt(0)")
    a("s_nop 10")
    a(f"v_mov_b32 v12, v{O+10}")
    a(f"v_mov_b32 v13, v{O+10}")
    a("s_nop 1")
    a("v_permlane32_swap_b32 v12, v13")
    a("s_cmp_lg_u32 s22, 0")
    a("s_cbranch_scc1 K2_OUT")
    a(f"v_max3_f32 v14, |v{O}|, |v{O+1}|, |v{O+2}|")
    for i in range(3, 9, 2):
        a(f"v_max3_f32 v14, v14, |v{O+i}|, |v{O+i+1}|")
    a(f"v_max_f32 v14, v14, |v{O+9}|".replace("v_max_f32", "v_max_f32_e64"))
    a(f"s_mov_b32 s24, {fhex(2.0**-80)}")
    a(f"s_mov_b32 s25, {fhex(2.0**110)}")
    a(f"s_mov_b32 s26, {fhex(2.0**126)}")
    a("v_cmp_le_f32 vcc, s24, v12")
    a("v_cmp_ge_f32 s[28:29], s25, v12")
    a("s_and_b64 vcc, vcc, s[28:29]")
    a("v_cmp_ge_f32 s[28:29], s26, v14")
    a("s_and_b64 vcc, vcc, s[28:29]")
    a("s_cmp_eq_u64 vcc, -1")
    a("s_cbranch_scc1 K2_OUT")
    k2_addr(a)
    a("v_mov_b32 v15, 0xff800000")
    a("s_mov_b32 s21, 0")
    a.label("K2_MAX")
    a(f"ds_read_b128 {vr(KM[0],4)}, v1")
    a(f"ds_read_b32 v{KR[0]}, v2")
    a("s_waitcnt lgkmcnt(0)")
    mf(a, S0, KM[0], QM, "0")
    mf(a, S0, KR[0], QR, S0)
    a(f"v_add_u32 v1, {KVBLOB}, v1")
    a(f"v_add_u32 v2, {KVBLOB}, v2")
    a("s_nop 10")
    for i in range(0, 16, 2):
        a(f"v_max3_f32 v15, v15, v{S0+i}, v{S0+i+1}")
    a("s_add_u32 s21, s21, 1")
    a("s_cmp_lt_u32 s21, 64")
    a("s_cbranch_scc1 K2_MAX")
    a("v_mov_b32 v14, v15")
    a("s_nop 1")
    a("v_permlane32_swap_b32 v14, v15")
    a("v_max_f32 v14, v14, v15")
    for r in range(16):
        a(f"v_sub_f32 v{NEGM+r}, 0, v14")
    k2_addr(a)
    a("s_mov_b32 s22, 1")
    a("s_branch K2_START")
    a.label("K2_OUT")
    a("v_rcp_f32 v12, v12")
    a("s_nop 0")
    for i in range(10):
        a(f"v_mul_f32 v{O+i}, v{O+i}, v12")
    for i in range(5):
        a(f"v_cvt_pk_bf16_f32 v{PB+i}, v{O+2*i}, v{O+2*i+1}")
    a("s_mul_i32 s6, s5, 36")
    a("s_add_u32 s7, s6, s4")
    a("s_lshl_b32 s7, s7, 10")
    a(f"s_add_u32 s7, s7, {OFF_OF}")
    a("v_lshlrev_b32 v1, 4, v0")
    a(f"buffer_store_dwordx4 {vr(PB,4)}, v1, s[8:11], s7 offen")
    a("s_lshr_b32 s7, s4, 3")
    a("s_add_u32 s6, s6, s7")
    a("s_add_u32 s6, s6, 32")
    a("s_lshl_b32 s6, s6, 10")
    a("s_and_b32 s7, s4, 4")
    a("s_lshl_b32 s7, s7, 7")
    a("s_add_u32 s6, s6, s7")
    a("s_and_b32 s7, s4, 3")
    a("s_lshl_b32 s7, s7, 2")
    a("s_add_u32 s6, s6, s7")
    a(f"s_add_u32 s6, s6, {OFF_OF}")
    a("s_mov_b32 exec_hi, 0")
    a(f"buffer_store_dword v{PB+4}, v1, s[8:11], s6 offen")
    a.label("K2_END")
    a("s_endpgm")
```

```python
from asmlib import Asm, vr, sr
from layout import *
from k1 import fhex, ldptr, srd_tail
from k2 import mf


def task_ids(a):
    a("v_lshrrev_b32 v1, 6, v0")
    a("v_and_b32 v0, 63, v0")
    a("v_readfirstlane_b32 s3, v1")
    a("s_lshl_b32 s4, s2, 2")
    a("s_add_u32 s4, s4, s3")
    a("s_mul_i32 s5, s4, 3641")
    a("s_lshr_b32 s5, s5, 16")
    a("s_mul_i32 s6, s5, 18")
    a("s_sub_u32 s6, s4, s6")


def gen_k3(a):
    a.label("k3_kernel")
    a("s_cmp_ge_u32 s2, 288")
    a("s_cbranch_scc1 K3_END")
    ldptr(a, 8, "ws")
    ldptr(a, 12, "out")
    srd_tail(a, 8, WS_REC)
    srd_tail(a, 12, SZ_OUT)
    task_ids(a)
    a("v_lshlrev_b32 v1, 4, v0")
    a("s_mul_i32 s20, s6, 36864")
    a(f"s_add_u32 s20, s20, {OFF_WOF}")
    a("s_mul_i32 s21, s5, 36864")
    a(f"s_add_u32 s21, s21, {OFF_OF}")
    for r in range(16):
        a(f"v_mov_b32 v{16+r}, 0")
    a("s_waitcnt lgkmcnt(0)")
    DEP = 6
    for i in range(DEP):
        a(f"buffer_load_dwordx4 {vr(32+8*i,4)}, v1, s[8:11], s20 offen")
        a(f"buffer_load_dwordx4 {vr(36+8*i,4)}, v1, s[8:11], s21 offen")
        a("s_add_u32 s20, s20, 1024")
        a("s_add_u32 s21, s21, 1024")
    a("s_mov_b32 s22, 0")
    a.label("K3_LOOP")
    for i in range(DEP):
        a(f"s_waitcnt vmcnt({2*DEP-2})")
        mf(a, 16, 32 + 8 * i, 36 + 8 * i, 16)
        a(f"buffer_load_dwordx4 {vr(32+8*i,4)}, v1, s[8:11], s20 offen")
        a(f"buffer_load_dwordx4 {vr(36+8*i,4)}, v1, s[8:11], s21 offen")
        a("s_add_u32 s20, s20, 1024")
        a("s_add_u32 s21, s21, 1024")
    a("s_add_u32 s22, s22, 1")
    a(f"s_cmp_lt_u32 s22, {36//DEP}")
    a("s_cbranch_scc1 K3_LOOP")
    a("s_mul_i32 s20, s5, 18")
    a("s_add_u32 s20, s20, s6")
    a("s_lshl_b32 s20, s20, 12")
    a(f"s_add_u32 s20, s20, {OFF_Y}")
    a("s_waitcnt vmcnt(0)")
    for q in range(4):
        a(f"buffer_load_dwordx4 {vr(32+4*q,4)}, v1, s[8:11], s20 offen offset:{1024*q}")
    a("v_and_b32 v2, 31, v0")
    a("s_lshl_b32 s21, s5, 5")
    a("v_add_u32 v2, s21, v2")
    a("v_lshlrev_b32 v3, 2, v2")
    a(f"s_mov_b32 s21, {OFF_G}")
    a("buffer_load_dword v4, v3, s[8:11], s21 offen")
    a("v_mul_u32_u24 v2, 2304, v2")
    a("v_lshrrev_b32 v3, 5, v0")
    a("v_lshl_add_u32 v2, v3, 4, v2")
    a("s_lshl_b32 s21, s6, 7")
    a("s_waitcnt vmcnt(0)")
    a("v_sub_f32 v4, 1.0, v4")
    for r in range(16):
        a(f"v_fmac_f32 v{32+r}, v4, v{16+r}")
    for q in range(4):
        a(f"buffer_store_dwordx4 {vr(32+4*q,4)}, v2, s[12:15], s21 offen offset:{32*q}")
    a.label("K3_END")
    a("s_endpgm")
```

```python
from asmlib import Asm, vr, sr
from layout import *
from k1 import fhex, ldptr, srd_tail
from k2 import mf
from k3 import task_ids

ARE, AIM = 16, 32
BUF = 48


def cmul_sq(a, dr, di, sr_, si):
    a(f"v_mul_f32 v{dr}, v{sr_}, v{sr_}")
    a(f"v_fma_f32 v{dr}, -v{si}, v{si}, v{dr}")
    a(f"v_mul_f32 v{di}, v{sr_}, v{si}")
    a(f"v_add_f32 v{di}, v{di}, v{di}")


def cfma(a, dr, di, lr, li, hr, hi, ur, ui):
    a(f"v_fma_f32 v{dr}, v{lr}, v{hr}, v{ur}")
    a(f"v_fma_f32 v{di}, v{lr}, v{hi}, v{ui}")
    a(f"v_fma_f32 v{dr}, -v{li}, v{hi}, v{dr}")
    a(f"v_fma_f32 v{di}, v{li}, v{hr}, v{di}")


def poll(a, name, soff_reg, target):
    a("v_mov_b32 v120, 0")
    a("s_mov_b32 s29, 0")
    a.label(name)
    a(f"buffer_load_dword v121, v120, s[8:11], s{soff_reg} offen sc1")
    a("s_waitcnt vmcnt(0)")
    a("v_readfirstlane_b32 s28, v121")
    a(f"s_cmp_ge_u32 s28, {target}")
    a(f"s_cbranch_scc1 {name}_OK")
    a("s_add_u32 s29, s29, 1")
    a("s_cmp_ge_u32 s29, 0x80000")
    a(f"s_cbranch_scc1 {name}_OK")
    a("s_sleep 4")
    a(f"s_branch {name}")
    a.label(name + "_OK")


def signal(a, soff_reg):
    a("s_waitcnt vmcnt(0)")
    a("v_mov_b32 v120, 0")
    a("v_mov_b32 v121, 1")
    a("s_mov_b64 s[26:27], exec")
    a("s_mov_b64 exec, 1")
    a(f"buffer_atomic_add v121, v120, s[8:11], s{soff_reg} offen")
    a("s_mov_b64 exec, s[26:27]")


def gen_ks(a):
    a.label("ks_kernel")
    a("s_cmp_ge_u32 s2, 288")
    a("s_cbranch_scc1 KS_END")
    ldptr(a, 8, "ws")
    ldptr(a, 12, "A_x")
    ldptr(a, 16, "Dskip")
    srd_tail(a, 8, WS_REC)
    srd_tail(a, 12, SZ_X)
    srd_tail(a, 16, SZ_VEC)
    task_ids(a)
    a("v_lshlrev_b32 v1, 4, v0")
    a("v_and_b32 v2, 31, v0")
    a("v_lshrrev_b32 v3, 5, v0")
    a("s_mul_i32 s20, s5, 36864")
    a(f"s_add_u32 s20, s20, {OFF_XF}")
    a("s_mul_i32 s21, s6, 73728")
    a(f"s_add_u32 s21, s21, {OFF_BF}")
    a("s_add_u32 s22, s21, 36864")
    for r in range(32):
        a(f"v_mov_b32 v{ARE+r}, 0")
    a("s_waitcnt lgkmcnt(0)")
    a("s_lshl_b32 s23, s6, 8")
    a(f"s_add_u32 s23, s23, {OFF_LAM}")
    a("v_lshlrev_b32 v4, 3, v2")
    a("buffer_load_dwordx2 v[6:7], v4, s[8:11], s23 offen")

    DEP = 6

    def ld(i):
        a(f"buffer_load_dwordx4 {vr(BUF+12*i,4)}, v1, s[8:11], s20 offen")
        a(f"buffer_load_dwordx4 {vr(BUF+12*i+4,4)}, v1, s[8:11], s21 offen")
        a(f"buffer_load_dwordx4 {vr(BUF+12*i+8,4)}, v1, s[8:11], s22 offen")
        a("s_add_u32 s20, s20, 1024")
        a("s_add_u32 s21, s21, 1024")
        a("s_add_u32 s22, s22, 1024")
    for i in range(DEP):
        ld(i)
    a("s_mov_b32 s24, 0")
    a.label("KS_L1")
    for i in range(DEP):
        a(f"s_waitcnt vmcnt({3*DEP-3})")
        mf(a, ARE, BUF + 12 * i, BUF + 12 * i + 4, ARE)
        mf(a, AIM, BUF + 12 * i, BUF + 12 * i + 8, AIM)
        ld(i)
    a("s_add_u32 s24, s24, 1")
    a(f"s_cmp_lt_u32 s24, {36//DEP}")
    a("s_cbranch_scc1 KS_L1")
    a("s_waitcnt vmcnt(0)")
    cmul_sq(a, 8, 9, 6, 7)
    cmul_sq(a, 10, 11, 8, 9)
    cmul_sq(a, 8, 9, 10, 11)
    cmul_sq(a, 12, 13, 8, 9)
    cmul_sq(a, 10, 11, 12, 13)
    a("v_mov_b32 v8, v12")
    a("v_mov_b32 v9, v13")
    a(f"v_mov_b32 v12, v{ARE}")
    a(f"v_mov_b32 v13, v{AIM}")
    for r in range(1, 16):
        s_, d_ = (12, 14) if r & 1 else (14, 12)
        cfma(a, d_, d_ + 1, 6, 7, s_, s_ + 1, ARE + r, AIM + r)
    a("v_mov_b32 v12, v14")
    a("v_mov_b32 v13, v15")
    a("s_nop 1")
    a("v_permlane32_swap_b32 v12, v14")
    a("v_permlane32_swap_b32 v13, v15")
    a("s_nop 1")
    cfma(a, 4, 5, 8, 9, 12, 13, 14, 15)
    a("s_mul_i32 s23, s5, 4608")
    a("s_lshl_b32 s24, s6, 8")
    a("s_add_u32 s23, s23, s24")
    a(f"s_add_u32 s23, s23, {OFF_E}")
    a("v_lshlrev_b32 v122, 3, v2")
    a("buffer_store_dwordx2 v[4:5], v122, s[8:11], s23 offen sc1")
    a("s_lshl_b32 s25, s6, 7")
    a(f"s_add_u32 s25, s25, {OFF_FLAG}")
    signal(a, 25)
    poll(a, "KS_W1", 25, 64)
    a("v_mov_b32 v4, 0")
    a("v_mov_b32 v5, 0")
    a("s_lshl_b32 s23, s6, 8")
    a(f"s_add_u32 s23, s23, {OFF_E}")
    a("s_mov_b32 s24, 0")
    a.label("KS_C")
    a("s_cmp_ge_u32 s24, s5")
    a("s_cbranch_scc1 KS_CE")
    a("buffer_load_dwordx2 v[14:15], v122, s[8:11], s23 offen sc1")
    a("s_add_u32 s23, s23, 4608")
    a("s_add_u32 s24, s24, 1")
    a("s_waitcnt vmcnt(0)")
    cfma(a, 124, 125, 10, 11, 4, 5, 14, 15)
    a("v_mov_b32 v4, v124")
    a("v_mov_b32 v5, v125")
    a("s_branch KS_C")
    a.label("KS_CE")
    cfma(a, 14, 15, 8, 9, 4, 5, 12, 13)
    a("v_cmp_gt_u32 vcc, 32, v0")
    a("s_nop 1")
    a("v_cndmask_b32 v12, v14, v4, vcc")
    a("v_cndmask_b32 v13, v15, v5, vcc")
    for r in range(16):
        s_, d_ = (12, 14) if (r & 1) == 0 else (14, 12)
        cfma(a, d_, d_ + 1, 6, 7, s_, s_ + 1, ARE + r, AIM + r)
        a(f"v_cvt_pk_bf16_f32 v{BUF+r}, v{d_}, v{d_+1}")
    a("v_lshrrev_b32 v4, 3, v2")
    a("v_lshlrev_b32 v4, 10, v4")
    a("v_lshrrev_b32 v5, 2, v2")
    a("v_and_b32 v5, 1, v5")
    a("v_lshl_add_u32 v4, v5, 9, v4")
    a("v_lshl_add_u32 v4, v3, 8, v4")
    a("v_and_b32 v5, 3, v2")
    a("v_lshl_add_u32 v4, v5, 2, v4")
    a("s_mul_i32 s23, s5, 73728")
    a("s_lshl_b32 s24, s6, 12")
    a("s_add_u32 s23, s23, s24")
    a(f"s_add_u32 s23, s23, {OFF_HF}")
    for r in range(16):
        a(f"buffer_store_dword v{BUF+r}, v4, s[8:11], s23 offen offset:{16*r} sc1")
    a("s_add_u32 s25, s5, 18")
    a("s_lshl_b32 s25, s25, 7")
    a(f"s_add_u32 s25, s25, {OFF_FLAG}")
    signal(a, 25)
    a("s_lshl_b32 s23, s5, 5")
    a("v_add_u32 v4, s23, v2")
    a("v_lshlrev_b32 v5, 2, v4")
    a(f"s_mov_b32 s24, {OFF_G}")
    a("buffer_load_dword v6, v5, s[8:11], s24 offen")
    a("v_mul_u32_u24 v4, 1152, v4")
    a("v_lshl_add_u32 v4, v3, 3, v4")
    a("v_lshlrev_b32 v5, 3, v3")
    a("s_lshl_b32 s24, s6, 6")
    for q in range(4):
        a(f"buffer_load_dwordx2 {vr(104+2*q,2)}, v4, s[12:15], s24 offen offset:{16*q}")
        a(f"buffer_load_dwordx2 {vr(112+2*q,2)}, v5, s[16:19], s24 offen offset:{16*q}")
    for r in range(16):
        a(f"v_mov_b32 v{ARE+r}, 0")
    poll(a, "KS_W2", 25, 18)
    a("s_mul_i32 s20, s6, 73728")
    a(f"s_add_u32 s20, s20, {OFF_CF}")
    a("s_mul_i32 s21, s5, 73728")
    a(f"s_add_u32 s21, s21, {OFF_HF}")
    DEP2 = 6

    def ld2(i):
        b = 32 + 8 * i
        a(f"buffer_load_dwordx4 {vr(b,4)}, v1, s[8:11], s20 offen")
        a(f"buffer_load_dwordx4 {vr(b+4,4)}, v1, s[8:11], s21 offen sc1")
        a("s_add_u32 s20, s20, 1024")
        a("s_add_u32 s21, s21, 1024")
    for i in range(DEP2):
        ld2(i)
    a("s_mov_b32 s24, 0")
    a.label("KS_L2")
    for i in range(DEP2):
        a(f"s_waitcnt vmcnt({2*DEP2-2})")
        mf(a, ARE, 32 + 8 * i, 36 + 8 * i, ARE)
        ld2(i)
    a("s_add_u32 s24, s24, 1")
    a(f"s_cmp_lt_u32 s24, {72//DEP2 - 1}")
    a("s_cbranch_scc1 KS_L2")
    for i in range(DEP2):
        a(f"s_waitcnt vmcnt({2*DEP2-2-2*i})")
        mf(a, ARE, 32 + 8 * i, 36 + 8 * i, ARE)
    a("s_mul_i32 s20, s5, 18")
    a("s_add_u32 s20, s20, s6")
    a("s_lshl_b32 s20, s20, 12")
    a(f"s_add_u32 s20, s20, {OFF_Y}")
    a("s_nop 8")
    for q in range(4):
        for b in range(4):
            xr = 104 + 2 * q + (b >> 1)
            dr = 112 + 2 * q + (b >> 1)
            if b & 1:
                a(f"v_and_b32 v8, 0xffff0000, v{xr}")
                a(f"v_and_b32 v9, 0xffff0000, v{dr}")
            else:
                a(f"v_lshlrev_b32 v8, 16, v{xr}")
                a(f"v_lshlrev_b32 v9, 16, v{dr}")
            a(f"v_fmac_f32 v{ARE+4*q+b}, v8, v9")
            a(f"v_mul_f32 v{ARE+4*q+b}, v6, v{ARE+4*q+b}")
        a(f"buffer_store_dwordx4 {vr(ARE+4*q,4)}, v1, s[8:11], s20 offen offset:{1024*q}")
    a.label("KS_END")
    a("s_endpgm")
```

```python
S = 2048
D = 576
H = 32
QBLOB = 1152
KVBLOB = 2368
OFF_QF = 0
OFF_KV = OFF_QF + H * 64 * QBLOB
OFF_XF = OFF_KV + H * 64 * KVBLOB + 8192
OFF_BF = OFF_XF + 64 * 36 * 1024
OFF_CF = OFF_BF + 36 * 36 * 1024
OFF_WOF = OFF_CF + 18 * 72 * 1024
OFF_HF = OFF_WOF + 18 * 36 * 1024
OFF_OF = OFF_HF + 64 * 72 * 1024
OFF_Y = OFF_OF + 64 * 36 * 1024
OFF_G = OFF_Y + 64 * 18 * 4096
OFF_LAM = OFF_G + 8192
OFF_E = OFF_LAM + 8192
OFF_FLAG = OFF_E + 64 * 576 * 8
OFF_STAMP = OFF_FLAG + 144 * 128
WS_USED = OFF_STAMP + 65536
WS_REC = 0x2000000
assert WS_USED < WS_REC

KA = dict(A_x=0, L_re=8, L_im=16, B_re=24, B_im=32, C_re=40, C_im=48, log_dt=56, Dskip=64, B_x=72, wqkv=80, wo=88,
          gate_w=96, out=104, dbg=112, ws=120)
SZ_X = 2048 * 576 * 2
SZ_SQ = 576 * 576 * 2
SZ_WQKV = 576 * 1728 * 2
SZ_VEC = 576 * 2
SZ_OUT = 2048 * 576 * 4
LOG2E = 1.4426950408889634
QSCALE = LOG2E * 18 ** -0.5
```

```python
import sys
sys.path.insert(0, "gen")
from asmlib import Asm, check_hazards
from layout import *
import k1, k2, k3, ks

NAME = "gated_mix__ssm_conv_s5__softmax_full_mha__prompt"

HEADER_COMMON = """; Kernarg layout (128 bytes, pointers only, base s[0:1]):
"""


def kd(name, vgpr, sgpr=64):
    acc = (vgpr + 3) // 4 * 4
    return f""".amdhsa_kernel {name}
  .amdhsa_next_free_vgpr {vgpr}
  .amdhsa_next_free_sgpr {sgpr}
  .amdhsa_accum_offset {acc}
  .amdhsa_group_segment_fixed_size 0
  .amdhsa_kernarg_size 128
  .amdhsa_user_sgpr_count 2
  .amdhsa_user_sgpr_kernarg_segment_ptr 1
  .amdhsa_system_sgpr_workgroup_id_x 1
.end_amdhsa_kernel
"""


KERNELS = [
    ("k1_kernel", k1.gen_k1, 256, 512, k1.SLOT * k1.NSLOT, 192),
    ("ks_kernel", ks.gen_ks, 288, 256, 0, 128),
    ("k2_kernel", k2.gen_k2, 256, 512, k2.LDS_K2, 112),
    ("k3_kernel", k3.gen_k3, 288, 256, 0, 80),
]


def build(kernels=KERNELS, order=None):
    order = order or [k[0] for k in kernels]
    by = {k[0]: k for k in kernels}
    out = HEADER_COMMON
    for n in order:
        _, _, g, b, lds, _ = by[n]
        out += f"; @launch kernel={n} grid=({g},1,1) block=({b},1,1) lds={lds}\n"
    out += '.amdgcn_target "amdgcn-amd-amdhsa--gfx950"\n.text\n'
    nprob = 0
    for label, gen, g, b, lds, vg in kernels:
        a = Asm()
        gen(a)
        nprob += len(check_hazards(a.text()))
        out += f".globl {label}\n.p2align 8\n.type {label},@function\n" + a.text()
    out += '.section .rodata,"a"\n'
    for label, gen, g, b, lds, vg in kernels:
        out += ".p2align 6\n" + kd(label, vg)
    return out, nprob


if __name__ == "__main__":
    txt, nprob = build()
    dst = sys.argv[1] if len(sys.argv) > 1 else f"cdna_kernels/{NAME}.s"
    open(dst, "w").write(txt)
    print("written", dst, len(txt), "bytes; hazards:", nprob)
```

```python
import sys
sys.path.insert(0, "gen")
import gen as G


def gen_nop(a):
    a.label("nop_kernel")
    a("s_endpgm")


K = G.KERNELS + [("nop_kernel", gen_nop, 1, 64, 0, 8)]
V = {
    "va": ["k1_kernel", "ks_kernel", "k2_kernel", "k3_kernel"],
    "vb": ["k1_kernel", "ks_kernel", "k2_kernel", "k3_kernel"] + ["nop_kernel"] * 4,
    "vc": ["k1_kernel", "k1_kernel", "ks_kernel", "k2_kernel", "k3_kernel"],
    "vd": ["k1_kernel", "ks_kernel", "k2_kernel", "k2_kernel", "k3_kernel"],
    "ve": ["k1_kernel", "ks_kernel", "k2_kernel", "k3_kernel", "k3_kernel"],
    "vf": ["k1_kernel", "ks_kernel", "ks_kernel", "k2_kernel", "k3_kernel"],
}
for n, order in V.items():
    ks = K if "nop_kernel" in order else G.KERNELS
    txt, nprob = G.build(ks, order)
    open(f"exp/{n}.s", "w").write(txt)
    print(n, nprob)
```

```python
S = 2048
D = 576
H = 32
QBLOB = 1152
KVBLOB = 2368
OFF_QF = 0
OFF_KV = OFF_QF + H * 64 * QBLOB
OFF_UT = OFF_KV + H * 64 * KVBLOB + 8192
SZ_UT = 32 * 2 * 576 * 128
OFF_E = OFF_UT + SZ_UT
OFF_G = OFF_E + 128 * 576 * 8
OFF_LAM = OFF_G + 8192
OFF_F2 = OFF_LAM + 576 * 8
OFF_CF = OFF_F2 + 576 * 8 + 1024
OFF_OF = OFF_CF + 2 * 576 * 576 * 2
SZ_OF = 32 * 9 * 8192
SZ_E = 128 * 576 * 8
WS_USED = OFF_OF + SZ_OF
WS_REC = 0x2000000
assert WS_USED < 0x1800000

KA = dict(A_x=0, L_re=8, L_im=16, B_re=24, B_im=32, C_re=40, C_im=48, log_dt=56, Dskip=64, B_x=72, wqkv=80, wo=88,
          gate_w=96, out=104, dbg=112, ws=120)
SZ_X = 2048 * 576 * 2
SZ_SQ = 576 * 576 * 2
SZ_WQKV = 576 * 1728 * 2
SZ_VEC = 576 * 2
SZ_OUT = 2048 * 576 * 4
LOG2E = 1.4426950408889634
QSCALE = LOG2E * 18 ** -0.5
```

```python
import struct
from asmlib import Asm, vr, sr
from layout import *
import stamp


def fhex(x):
    return hex(struct.unpack("<I", struct.pack("<f", x))[0])


def ldptr(a, sd, name):
    a(f"s_load_dwordx2 s[{sd}:{sd+1}], s[0:1], {KA[name]}")


def srd_tail(a, sd, size):
    a(f"s_mov_b32 s{sd+2}, {size}")
    a(f"s_mov_b32 s{sd+3}, 0x00020000")


SLOT = 40960
NSLOT = 4
W_OFF = 16384
B_OFF = 30720
WROW = 224
LDS_K1 = SLOT * NSLOT

ACC = 16
XF = (112, 152)
WF = (128, 168)
OPT = {}


def acc(j, tt):
    return ACC + 16 * j + 4 * tt


def lmark(a, i):
    if OPT.get("lm"):
        stamp.mark(a, i)


def cmark(a, i):
    if not OPT.get("lm"):
        stamp.mark(a, i)


def issue(a, lw):
    n = 0
    for pp in range(4):
        a(f"s_add_u32 m0, s40, {lw*4096 + pp*1024}")
        a(f"s_add_u32 s45, s41, {pp*9216}")
        a(f"buffer_load_dwordx4 v{1 + (pp >> 1)}, s[8:11], s45 offen lds")
        n += 1
    qs = [range(0, 4), range(4, 8), range(8, 11), range(11, 14)][lw]
    for i, q in enumerate(qs):
        a(f"s_add_u32 m0, s40, {W_OFF + q*1024}")
        a("s_nop 0")
        a(f"buffer_load_dwordx4 v{3+i}, s[12:15], s42 offen lds")
        n += 1
    for part in range(2):
        a(f"s_add_u32 m0, s40, {B_OFF + (16*lw + 8*part)*128}")
        a(f"s_add_u32 s45, s41, {8*lw*1152}")
        a(f"buffer_load_dwordx4 v7, s[{16+4*part}:{19+4*part}], s45 offen lds")
        n += 1
    if lw >= 2:
        part = lw - 2
        a("s_mov_b32 exec_hi, 0")
        a(f"s_add_u32 m0, s40, {B_OFF + (64 + 8*part)*128}")
        a(f"s_add_u32 s45, s41, {32*1152}")
        a(f"buffer_load_dwordx4 v7, s[{16+4*part}:{19+4*part}], s45 offen lds")
        n += 1
        if lw == 3:
            a("s_mov_b32 exec_lo, 0")
            a("s_mov_b32 exec_hi, 0xff")
            a(f"s_add_u32 m0, s40, {B_OFF + 64*128}")
            a("s_nop 0")
            a("buffer_load_dwordx4 v8, s[24:27], s41 offen lds")
            a("s_mov_b32 exec_lo, -1")
            n += 1
        a("s_mov_b32 exec_hi, -1")
    a("s_add_u32 s41, s41, 128")
    a("s_add_u32 s42, s42, 221184")
    a("s_cmp_eq_u32 s41, 1152")
    a("s_cselect_b32 s41, 0, s41")
    a("s_cselect_b32 s42, 0, s42")
    a(f"s_add_u32 s40, s40, {SLOT}")
    a(f"s_cmp_eq_u32 s40, {SLOT*NSLOT}")
    a("s_cselect_b32 s40, 0, s40")
    return n


def loader(a, lw):
    a.label(f"K1_L{lw}")
    a("v_lshrrev_b32 v9, 3, v0")
    a("v_and_b32 v10, 7, v0")
    a("v_xor_b32 v10, v10, v9")
    a("v_lshlrev_b32 v8, 4, v10")
    a("s_lshl_b32 s46, s6, 7")
    a(f"s_add_u32 s46, s46, {32*lw}")
    a("v_add_u32 v10, s46, v9")
    a("v_mul_u32_u24 v10, 1152, v10")
    a("v_add_u32 v1, v10, v8")
    a("v_xor_b32 v2, 64, v1")
    a("s_mul_i32 s46, s7, 36")
    a("v_add_u32 v10, s46, v9")
    a("v_mul_u32_u24 v10, 1152, v10")
    a("v_add_u32 v7, v10, v8")
    a("s_mul_i32 s46, s7, 216")
    a("s_and_b32 s47, s7, 1")
    a("s_lshl_b32 s47, s47, 3")
    a("s_sub_u32 s46, s46, s47")
    qs = [range(0, 4), range(4, 8), range(8, 11), range(11, 14)][lw]
    for i, q in enumerate(qs):
        a(f"v_add_u32 v10, {64*q}, v0" if q else "v_mov_b32 v10, v0")
        a("v_mul_u32_u24 v11, 4682, v10")
        a("v_lshrrev_b32 v11, 16, v11")
        a("v_mul_u32_u24 v12, 14, v11")
        a("v_sub_u32 v10, v10, v12")
        a("v_and_b32 v12, 4, v11")
        a("v_and_b32 v13, 8, v11")
        a("v_and_b32 v11, 0xfffffff3, v11")
        a("v_lshl_or_b32 v11, v12, 1, v11")
        a("v_lshrrev_b32 v13, 1, v13")
        a("v_or_b32 v11, v11, v13")
        a("v_mul_u32_u24 v11, 3456, v11")
        a("v_lshl_add_u32 v11, v10, 4, v11")
        a(f"v_add_u32 v{3+i}, s46, v11")
    a("s_mov_b32 s40, 0")
    st = OPT.get("stag", 3)
    if st:
        a("s_add_u32 s46, s6, s7")
        a(f"s_mul_i32 s47, s46, {65536 // st + 1}")
        a("s_lshr_b32 s47, s47, 16")
        a(f"s_mul_i32 s47, s47, {st}")
        a("s_sub_u32 s46, s46, s47")
        if st == 3:
            a("s_mul_i32 s46, s46, 3")
        else:
            a("s_mul_i32 s46, s46, 9")
            a("s_add_u32 s46, s46, 1")
            a("s_lshr_b32 s46, s46, 2") if st == 4 else a("s_lshr_b32 s46, s46, 1")
        a("s_lshl_b32 s41, s46, 7")
        a("s_mul_i32 s42, s46, 221184")
    else:
        a("s_mov_b32 s41, 0")
        a("s_mov_b32 s42, 0")
    a("s_mov_b32 s44, 0")
    LA = OPT.get("la", 2)
    lmark(a, 1)
    a.label(f"K1_L{lw}_PRO")
    n = issue(a, lw)
    a("s_add_u32 s44, s44, 1")
    a(f"s_cmp_lt_u32 s44, {LA}")
    a(f"s_cbranch_scc1 K1_L{lw}_PRO")
    a.label(f"K1_L{lw}_LOOP")
    a(f"s_waitcnt vmcnt({(LA-1)*n})")
    if OPT.get("lm"):
        a(f"s_cmp_eq_u32 s44, {LA}")
        a(f"s_cbranch_scc0 K1_L{lw}_M2")
        lmark(a, 2)
        a.label(f"K1_L{lw}_M2")
        a(f"s_cmp_eq_u32 s44, {LA+1}")
        a(f"s_cbranch_scc0 K1_L{lw}_M3")
        lmark(a, 3)
        a.label(f"K1_L{lw}_M3")
    a("s_barrier")
    if not OPT.get("nodma"):
        issue(a, lw)
    a("s_add_u32 s44, s44, 1")
    a("s_cmp_lt_u32 s44, 9")
    a(f"s_cbranch_scc1 K1_L{lw}_LOOP")
    for r in range(LA - 1, -1, -1):
        a(f"s_waitcnt vmcnt({r*n})")
        if r == 0:
            lmark(a, 4)
        a("s_barrier")
    a("s_endpgm")


def reads(role, ks, st):
    out = []
    if OPT.get("nords"):
        return out
    for tt in range(4):
        step = 2048 if role == "T" else 512
        out.append(f"ds_read_b128 {vr(XF[st] + 4*tt, 4)}, v{7 + ((ks ^ tt) & 1)} offset:{tt*step}")
    if role == "T":
        for j in range(6):
            off = 72 * (j >> 1) + 40 * (j & 1) + ks * 32 * WROW
            out.append(f"ds_read_b64_tr_b16 {vr(WF[st] + 4*j, 2)}, v9 offset:{off}")
            out.append(f"ds_read_b64_tr_b16 {vr(WF[st] + 4*j + 2, 2)}, v9 offset:{off + 8*WROW}")
    else:
        off = ks * 32 * WROW
        out.append(f"ds_read_b64_tr_b16 {vr(WF[st], 2)}, v9 offset:{off}")
        out.append(f"ds_read_b64_tr_b16 {vr(WF[st] + 2, 2)}, v9 offset:{off + 8*WROW}")
        for b in range(5):
            out.append(f"ds_read_b128 {vr(WF[st] + 4 + 4*b, 4)}, v{10 + ks} offset:{b*2048}")
    return out


def mfmas(role, st):
    out = []
    if OPT.get("nomfma"):
        return ["s_nop 0"] * 24
    for j in range(6):
        for tt in range(4):
            x = vr(XF[st] + 4 * tt, 4)
            w = vr(WF[st] + 4 * j, 4)
            d = vr(acc(j, tt), 4)
            if role == "T" or j == 0:
                out.append(f"v_mfma_f32_16x16x32_bf16 {d}, {w}, {x}, {d}")
            else:
                out.append(f"v_mfma_f32_16x16x32_bf16 {d}, {x}, {w}, {d}")
    return out


def mainloop(a, role):
    name = f"K1_{role}"
    naddr = 3 if role == "T" else 5
    cmark(a, 1)
    a("s_barrier")
    cmark(a, 2)
    for r in range(naddr):
        a(f"v_mov_b32 v{7+r}, v{2+r}")
    a(f"s_mov_b32 s21, {SLOT}")
    a("s_mov_b32 s20, 0")
    for r in reads(role, 0, 0):
        a(r)
    a.label(f"{name}_LOOP")
    a("s_waitcnt lgkmcnt(0)")
    rd = reads(role, 1, 1)
    for i, m in enumerate(mfmas(role, 0)):
        a(m)
        if i < len(rd):
            a(rd[i])
    a("s_waitcnt lgkmcnt(0)")
    rd = reads(role, 0, 0)
    for i, m in enumerate(mfmas(role, 1)):
        a(m)
        if i == 1:
            a("s_cmp_eq_u32 s20, 8")
            a(f"s_cbranch_scc1 {name}_NOBAR")
            a("s_barrier")
            a.label(f"{name}_NOBAR")
            for r in range(naddr):
                a(f"v_add_u32 v{7+r}, s21, v{2+r}")
            a(f"s_add_u32 s21, s21, {SLOT}")
            a(f"s_cmp_eq_u32 s21, {SLOT*NSLOT}")
            a("s_cselect_b32 s21, 0, s21")
        if 2 <= i < 2 + len(rd):
            a(rd[i - 2])
    a("s_add_u32 s20, s20, 1")
    a("s_cmp_lt_u32 s20, 9")
    a(f"s_cbranch_scc1 {name}_LOOP")
    a("s_waitcnt vmcnt(0) lgkmcnt(0)")
    cmark(a, 3)


def ident(a, d):
    a("v_lshrrev_b32 v12, 4, v0")
    a("v_lshlrev_b32 v12, 2, v12")
    a("v_and_b32 v13, 15, v0")
    a("v_sub_u32 v12, v13, v12")
    a("v_mov_b32 v13, 0x3f80")
    a("v_mov_b32 v14, 0x3f800000")
    for h in range(2):
        a(f"v_cmp_eq_u32 vcc, {2*h}, v12")
        a("s_nop 1")
        a(f"v_cndmask_b32 v{d+h}, 0, v13, vcc")
        a(f"v_cmp_eq_u32 vcc, {2*h+1}, v12")
        a("s_nop 1")
        a(f"v_cndmask_b32 v{d+h}, v{d+h}, v14, vcc")


def w_rowbase(a, dst):
    a("v_lshrrev_b32 v12, 4, v0")
    a("v_lshrrev_b32 v13, 1, v12")
    a("v_lshlrev_b32 v13, 4, v13")
    a("v_and_b32 v12, 1, v12")
    a("v_lshl_add_u32 v13, v12, 2, v13")
    a("v_bfe_u32 v12, v0, 2, 2")
    a("v_add_u32 v13, v13, v12")
    a(f"v_mul_u32_u24 v13, {WROW}, v13")
    a("s_and_b32 s46, s7, 1")
    a("s_lshl_b32 s46, s46, 3")
    a(f"s_add_u32 s46, s46, {W_OFF}")
    a(f"v_add_u32 v{dst}, s46, v13")


def swz(a, dst):
    a("v_lshrrev_b32 v12, 4, v0")
    a("v_and_b32 v13, 3, v0")
    a("v_xor_b32 v12, v12, v13")
    a("v_lshlrev_b32 v12, 4, v12")
    a("v_bfe_u32 v13, v0, 2, 1")
    a(f"v_lshl_add_u32 v{dst}, v13, 6, v12")


def role_t(a):
    a.label("K1_ROLE_T")
    swz(a, 14)
    a("v_and_b32 v15, 15, v0")
    a("s_lshl_b32 s46, s5, 6")
    a("v_add_u32 v15, s46, v15")
    a("v_lshl_add_u32 v2, v15, 7, v14")
    a("v_xor_b32 v3, 64, v2")
    w_rowbase(a, 4)
    a("v_and_b32 v13, 3, v0")
    a("v_lshl_add_u32 v4, v13, 3, v4")
    for r in range(96):
        a(f"v_mov_b32 v{ACC+r}, 0")
    ident(a, 192)
    mainloop(a, "T")
    a("v_lshlrev_b32 v2, 4, v0")
    a("v_lshrrev_b32 v3, 4, v0")
    a("v_mul_u32_u24 v3, 304, v3")
    a("v_and_b32 v4, 15, v0")
    a("v_lshl_add_u32 v3, v4, 4, v3")
    a("v_add_u32 v3, 1152, v3")
    a("s_lshl_b32 s30, s6, 2")
    a("s_lshl_b32 s31, s5, 1")
    a("s_add_u32 s30, s30, s31")
    a("s_mul_i32 s31, s7, 3")
    for j in range(3):
        if j:
            a("s_add_u32 s31, s31, 1")
        a("s_and_b32 s32, s31, 15")
        a("s_lshl_b32 s32, s32, 7")
        a("s_add_u32 s32, s32, s30")
        a("s_cmp_ge_u32 s31, 32")
        a(f"s_cbranch_scc1 K1_TV{j}")
        a("s_cmp_ge_u32 s31, 16")
        a(f"s_mov_b32 s33, {QBLOB}")
        a(f"s_cselect_b32 s33, {KVBLOB}, s33")
        a(f"s_cselect_b32 s34, {OFF_KV}, {OFF_QF}")
        a(f"s_cselect_b32 s35, 1.0, {fhex(QSCALE)}")
        a("s_mul_i32 s36, s32, s33")
        a("s_add_u32 s36, s36, s34")
        a("s_mul_i32 s37, s33, 63")
        for par in range(2):
            for half in range(2):
                t = 112 + 4 * ((2 * par + half) & 1)
                for tt in range(2):
                    b = acc(2 * j + par, 2 * half + tt)
                    for r in range(4):
                        a(f"v_mul_f32 v{b+r}, s35, v{b+r}")
                for tt in range(2):
                    b = acc(2 * j + par, 2 * half + tt)
                    a(f"v_cvt_pk_bf16_f32 v{t+2*tt}, v{b}, v{b+1}")
                    a(f"v_cvt_pk_bf16_f32 v{t+2*tt+1}, v{b+2}, v{b+3}")
                a("s_nop 1")
                a(f"v_permlane16_swap_b32 v{t}, v{t+2}")
                a(f"v_permlane16_swap_b32 v{t+1}, v{t+3}")
                a(f"buffer_store_dwordx4 {vr(t,4)}, v2, s[8:11], s36 offen")
                if (par, half) != (1, 1):
                    a(f"s_add_u32 s36, s36, {'s33' if half == 0 else 's37'}")
        a(f"s_branch K1_TN{j}")
        a.label(f"K1_TV{j}")
        a(f"s_mul_i32 s36, s32, {KVBLOB}")
        a(f"s_add_u32 s36, s36, {OFF_KV}")
        for par in range(2):
            for half in range(2):
                q = 2 * par + half
                t = 112 + 4 * (q & 1)
                u = 120 + 8 * (q & 1)
                for tt in range(2):
                    b = acc(2 * j + par, 2 * half + tt)
                    a(f"v_cvt_pk_bf16_f32 v{136+4*(q&1)+2*tt}, v{b}, v{b+1}")
                    a(f"v_cvt_pk_bf16_f32 v{136+4*(q&1)+2*tt+1}, v{b+2}, v{b+3}")
                a("s_nop 1")
                for tt in range(2):
                    a(f"v_mfma_f32_16x16x16_bf16 {vr(u+4*tt,4)}, {vr(136+4*(q&1)+2*tt,2)}, v[192:193], 0")
                a("s_nop 7")
                for tt in range(2):
                    a(f"v_cvt_pk_bf16_f32 v{t+2*tt}, v{u+4*tt}, v{u+4*tt+1}")
                    a(f"v_cvt_pk_bf16_f32 v{t+2*tt+1}, v{u+4*tt+2}, v{u+4*tt+3}")
                a("s_nop 1")
                a(f"v_permlane32_swap_b32 v{t}, v{t+2}")
                a(f"v_permlane32_swap_b32 v{t+1}, v{t+3}")
                a(f"buffer_store_dwordx4 {vr(t,4)}, v3, s[8:11], s36 offen")
                if (par, half) != (1, 1):
                    a(f"s_add_u32 s36, s36, {KVBLOB if half == 0 else 63*KVBLOB}")
        a.label(f"K1_TN{j}")
    cmark(a, 4)
    a("s_endpgm")


def lam_calc(a, lr, li, ldt, o_re, o_im, t):
    a(f"v_mul_f32 v{t}, {fhex(LOG2E)}, v{ldt}")
    a(f"v_exp_f32 v{t}, v{t}")
    a("s_nop 0")
    a(f"v_cvt_pk_bf16_f32 v{t}, v{t}, v{t}")
    a(f"v_lshlrev_b32 v{t}, 16, v{t}")
    a(f"v_mul_f32 v{t+1}, v{t}, v{lr}")
    a(f"v_mul_f32 v{t+2}, v{t}, v{li}")
    a(f"v_mul_f32 v{t+1}, {fhex(LOG2E)}, v{t+1}")
    a(f"v_mul_f32 v{t+2}, 0.15915494, v{t+2}")
    a(f"v_exp_f32 v{t+1}, v{t+1}")
    a(f"v_fract_f32 v{t+2}, v{t+2}")
    a(f"v_cos_f32 v{t+3}, v{t+2}")
    a(f"v_sin_f32 v{t+2}, v{t+2}")
    a("s_nop 0")
    a(f"v_mul_f32 v{o_re}, v{t+1}, v{t+3}")
    a(f"v_mul_f32 v{o_im}, v{t+1}, v{t+2}")


LRE, LIS = 196, 201


def role_x(a):
    a.label("K1_ROLE_X")
    ldptr(a, 12, "L_re")
    ldptr(a, 16, "L_im")
    ldptr(a, 20, "log_dt")
    srd_tail(a, 12, SZ_VEC)
    srd_tail(a, 16, SZ_VEC)
    srd_tail(a, 20, SZ_VEC)
    a("s_mul_i32 s24, s7, 36")
    a("v_add_u32 v15, s24, v0")
    a("v_lshlrev_b32 v15, 1, v15")
    a("s_waitcnt lgkmcnt(0)")
    a("buffer_load_ushort v112, v15, s[12:15], 0 offen")
    a("buffer_load_ushort v113, v15, s[16:19], 0 offen")
    a("buffer_load_ushort v114, v15, s[20:23], 0 offen")
    swz(a, 14)
    a("v_bfe_u32 v12, v0, 2, 2")
    a("v_lshlrev_b32 v12, 4, v12")
    a("v_and_b32 v13, 3, v0")
    a("v_add_u32 v12, v12, v13")
    a("s_lshl_b32 s46, s5, 6")
    a("v_add_u32 v12, s46, v12")
    a("v_lshl_add_u32 v2, v12, 7, v14")
    a("v_xor_b32 v3, 64, v2")
    a("v_and_b32 v12, 15, v0")
    a("v_lshl_add_u32 v5, v12, 7, v14")
    a(f"v_add_u32 v5, {B_OFF}, v5")
    a("v_xor_b32 v6, 64, v5")
    w_rowbase(a, 4)
    a("v_and_b32 v13, 3, v0")
    a("v_min_u32 v13, 2, v13")
    a("v_mul_u32_u24 v13, 72, v13")
    a("v_add3_u32 v4, v4, v13, 32")
    for r in range(96):
        a(f"v_mov_b32 v{ACC+r}, 0")
    ident(a, 192)
    a("s_waitcnt vmcnt(0)")
    for k in range(3):
        a(f"v_lshlrev_b32 v{112+k}, 16, v{112+k}")
    lam_calc(a, 112, 113, 114, 116, 117, 120)
    a("v_add_f32 v118, -1.0, v116")
    a("v_mul_f32 v120, v112, v112")
    a("v_fmac_f32 v120, v113, v113")
    a("v_rcp_f32 v120, v120")
    a("v_mul_f32 v121, v118, v112")
    a("v_fmac_f32 v121, v117, v113")
    a("v_mul_f32 v122, v117, v112")
    a("v_fma_f32 v122, -v118, v113, v122")
    a("v_mul_f32 v118, v121, v120")
    a("v_mul_f32 v119, v122, v120")
    a("s_or_b32 s24, s6, s5")
    a("s_cmp_lg_u32 s24, 0")
    a("s_cbranch_scc1 K1_NOLAM")
    a("v_lshlrev_b32 v15, 2, v15")
    a("v_add_f32 v118, v118, v118")
    a("v_add_f32 v119, v119, v119")
    a(f"s_mov_b32 s24, {OFF_LAM}")
    a(f"s_mov_b32 s25, {OFF_F2}")
    a("v_lshrrev_b32 v12, 2, v15")
    a("v_bfe_u32 v13, v12, 2, 2")
    a("v_mul_u32_u24 v13, 1152, v13")
    a("v_lshrrev_b32 v14, 4, v12")
    a("v_lshl_add_u32 v13, v14, 4, v13")
    a("v_bfe_u32 v14, v12, 1, 1")
    a("v_lshl_add_u32 v13, v14, 3, v13")
    a("s_mov_b32 exec_hi, 0xf")
    a("buffer_store_dwordx2 v[116:117], v15, s[8:11], s24 offen")
    a("buffer_store_dwordx2 v[118:119], v13, s[8:11], s25 offen")
    a("s_mov_b32 exec_hi, -1")
    a.label("K1_NOLAM")
    a("v_and_b32 v12, 7, v0")
    a("v_lshlrev_b32 v12, 2, v12")
    for b in range(5):
        a(f"v_add_u32 v13, {32*b}, v12")
        a(f"ds_bpermute_b32 v{LRE+b}, v13, v116")
        a(f"ds_bpermute_b32 v{LIS+b}, v13, v117")
    a("v_and_b32 v12, 8, v0")
    a("v_lshlrev_b32 v12, 28, v12")
    a("v_xor_b32 v12, 0x80000000, v12")
    a("s_waitcnt lgkmcnt(0)")
    for b in range(5):
        a(f"v_xor_b32 v{LIS+b}, v12, v{LIS+b}")
    mainloop(a, "X")
    a("s_nop 7")
    a("s_lshl_b32 s30, s6, 1")
    a("s_add_u32 s30, s30, s5")
    a("v_and_b32 v12, 7, v0")
    a("v_bfe_u32 v13, v0, 3, 1")
    a("v_lshrrev_b32 v14, 4, v0")
    a("v_lshlrev_b32 v2, 7, v12")
    a(f"v_mul_u32_u24 v15, {576*128}, v13")
    a("v_add_u32 v2, v2, v15")
    a("v_lshl_add_u32 v2, v14, 5, v2")
    a("v_lshlrev_b32 v3, 5, v12")
    a("v_lshl_add_u32 v3, v13, 2, v3")
    a("v_lshl_add_u32 v3, v14, 3, v3")
    a(f"s_mul_i32 s31, s30, {2*576*128}")
    a(f"s_mul_i32 s32, s7, {36*128}")
    a("s_add_u32 s31, s31, s32")
    a(f"s_add_u32 s31, s31, {OFF_UT}")
    a(f"s_mul_i32 s33, s30, {576*32}")
    a(f"s_mul_i32 s32, s7, {36*32}")
    a("s_add_u32 s33, s33, s32")
    a(f"s_add_u32 s33, s33, {OFF_E}")
    for b in range(5):
        t = 112 + 8 * (b & 1)
        for tt in range(4):
            s_ = acc(1 + b, tt)
            a(f"v_cvt_pk_bf16_f32 v{t+2*tt}, v{s_}, v{s_+1}")
            a(f"v_cvt_pk_bf16_f32 v{t+2*tt+1}, v{s_+2}, v{s_+3}")
        if b == 4:
            a("s_mov_b32 exec_lo, 0x0f0f0f0f")
            a("s_mov_b32 exec_hi, 0x0f0f0f0f")
        a(f"buffer_store_dwordx4 {vr(t,4)}, v2, s[8:11], s31 offen offset:{0}")
        a(f"buffer_store_dwordx4 {vr(t+4,4)}, v2, s[8:11], s31 offen offset:{16}")
        if b < 4:
            a(f"s_add_u32 s31, s31, {8*128}")
    a("s_mov_b32 exec_lo, -1")
    a("s_mov_b32 exec_hi, -1")
    a("s_cmp_lg_u32 s7, 0")
    a("s_cbranch_scc1 K1_NOG")
    a("s_lshl_b32 s34, s5, 8")
    a(f"s_add_u32 s34, s34, {SLOT}")
    a("v_lshlrev_b32 v12, 6, v14")
    a("v_add_u32 v12, s34, v12")
    a("s_mov_b32 exec_lo, 0x00100010")
    a("s_mov_b32 exec_hi, 0x00100010")
    for tt in range(4):
        a(f"ds_write_b128 v12, {vr(acc(5,tt),4)} offset:{16*tt}")
    a("s_mov_b32 exec_lo, -1")
    a("s_mov_b32 exec_hi, -1")
    a("v_lshlrev_b32 v12, 2, v0")
    a("v_add_u32 v13, s34, v12")
    a("s_waitcnt lgkmcnt(0)")
    a("ds_read_b32 v13, v13")
    a("s_waitcnt lgkmcnt(0)")
    a(f"v_mul_f32 v13, {fhex(-LOG2E)}, v13")
    a("v_exp_f32 v13, v13")
    a("s_nop 0")
    a("v_add_f32 v13, 1.0, v13")
    a("v_rcp_f32 v13, v13")
    a("s_lshl_b32 s34, s30, 8")
    a(f"s_add_u32 s34, s34, {OFF_G}")
    a("buffer_store_dword v13, v12, s[8:11], s34 offen")
    a.label("K1_NOG")
    for s in range(1, 16):
        for b in range(5):
            cur = acc(1 + b, s >> 2) + (s & 3)
            prv = acc(1 + b, (s - 1) >> 2) + ((s - 1) & 3)
            a(f"v_fmac_f32 v{cur}, v{LRE+b}, v{prv}")
        for b in range(5):
            cur = acc(1 + b, s >> 2) + (s & 3)
            prv = acc(1 + b, (s - 1) >> 2) + ((s - 1) & 3)
            a(f"v_fmac_f32_dpp v{cur}, v{prv}, v{LIS+b} row_ror:8 row_mask:0xf bank_mask:0xf")
    for b in range(5):
        if b == 4:
            a("s_mov_b32 exec_lo, 0x0f0f0f0f")
            a("s_mov_b32 exec_hi, 0x0f0f0f0f")
        a(f"buffer_store_dword v{acc(1+b,3)+3}, v3, s[8:11], s33 offen offset:{256*b}")
    a("s_mov_b32 exec_lo, -1")
    a("s_mov_b32 exec_hi, -1")
    a("s_lshl_b32 s30, s6, 2")
    a("s_lshl_b32 s31, s5, 1")
    a("s_add_u32 s30, s30, s31")
    a("s_mul_i32 s31, s7, 3")
    a("v_add_u32 v2, s31, v14")
    a("v_and_b32 v3, 15, v2")
    a("v_lshlrev_b32 v3, 7, v3")
    a("v_bfe_u32 v4, v0, 3, 1")
    a("v_add3_u32 v3, v3, v4, s30")
    a("v_cmp_gt_u32 vcc, 16, v2")
    a(f"v_mov_b32 v5, {KVBLOB}")
    a(f"v_mov_b32 v6, {QBLOB}")
    a("v_cndmask_b32 v5, v5, v6, vcc")
    a(f"v_mov_b32 v6, {OFF_KV + 1024}")
    a(f"v_mov_b32 v7, {OFF_QF + 1024}")
    a("v_cndmask_b32 v6, v6, v7, vcc")
    a(f"v_mov_b32 v7, {fhex(QSCALE)}")
    a("v_cndmask_b32 v7, 1.0, v7, vcc")
    a("v_mul_lo_u32 v3, v3, v5")
    a("v_add_u32 v3, v3, v6")
    a("v_bfe_u32 v4, v0, 2, 1")
    a("v_lshlrev_b32 v4, 4, v4")
    a("v_and_b32 v6, 3, v0")
    a("v_add_u32 v4, v4, v6")
    a("v_lshl_add_u32 v3, v4, 2, v3")
    a("v_lshl_add_u32 v4, v5, 6, v3")
    a("v_cmp_gt_u32 vcc, 32, v2")
    a("v_cmp_gt_u32 s[36:37], 48, v0")
    a("s_and_b64 s[36:37], s[36:37], vcc")
    for tt in range(4):
        b = acc(0, tt)
        for r in range(4):
            a(f"v_mul_f32 v{112+4*tt+r}, v7, v{b+r}")
        a(f"v_cvt_pk_bf16_f32 v{128+2*tt}, v{112+4*tt}, v{113+4*tt}")
        a(f"v_cvt_pk_bf16_f32 v{129+2*tt}, v{114+4*tt}, v{115+4*tt}")
    a("s_mov_b64 exec, s[36:37]")
    a("s_cbranch_execz K1_NOQK")
    for tt in range(4):
        a(f"buffer_store_dword v{128+2*tt}, v3, s[8:11], 0 offen offset:{16*tt}")
        a(f"buffer_store_dword v{129+2*tt}, v4, s[8:11], 0 offen offset:{16*tt}")
    a.label("K1_NOQK")
    a("s_mov_b64 exec, -1")
    a("s_add_u32 s32, s31, 2")
    a("s_cmp_lt_u32 s32, 32")
    a("s_cbranch_scc1 K1_XEND")
    for tt in range(4):
        a(f"v_mfma_f32_16x16x16_bf16 {vr(136+4*tt,4)}, {vr(128+2*tt,2)}, v[192:193], 0")
    a("v_and_b32 v12, 15, v0")
    a("v_lshrrev_b32 v13, 2, v12")
    a("v_add_u32 v2, s31, v13")
    a("v_and_b32 v3, 15, v2")
    a("v_lshlrev_b32 v3, 7, v3")
    a("v_bfe_u32 v4, v0, 1, 1")
    a("v_lshl_add_u32 v3, v4, 6, v3")
    a("v_lshrrev_b32 v4, 5, v0")
    a("v_add3_u32 v3, v3, v4, s30")
    a(f"v_mul_u32_u24 v3, {KVBLOB}, v3")
    a("v_bfe_u32 v4, v0, 4, 1")
    a("v_mul_u32_u24 v4, 608, v4")
    a("v_and_b32 v5, 1, v0")
    a("v_lshl_add_u32 v4, v5, 4, v4")
    a("v_add_u32 v3, v3, v4")
    a(f"v_add_u32 v3, {OFF_KV + 1152 + 256}, v3")
    a("v_cmp_le_u32 vcc, 32, v2")
    a("v_cmp_gt_u32 s[36:37], 12, v12")
    a("s_and_b64 s[36:37], s[36:37], vcc")
    for r in range(4):
        a(f"v_mov_b32 v{120+r}, 0x3f803f80")
    for hh in range(2):
        for q in range(2):
            s_ = 136 + 4 * (hh + 2 * q)
            a(f"v_cvt_pk_bf16_f32 v{112+4*hh+2*q}, v{s_}, v{s_+1}")
            a(f"v_cvt_pk_bf16_f32 v{113+4*hh+2*q}, v{s_+2}, v{s_+3}")
    a("s_mov_b64 exec, s[36:37]")
    a("buffer_store_dwordx4 v[112:115], v3, s[8:11], 0 offen")
    a("buffer_store_dwordx4 v[116:119], v3, s[8:11], 0 offen offset:304")
    a("s_and_b32 exec_lo, exec_lo, 0x55555555")
    a("s_and_b32 exec_hi, exec_hi, 0x55555555")
    a("buffer_store_dwordx4 v[120:123], v3, s[8:11], 0 offen offset:32")
    a("buffer_store_dwordx4 v[120:123], v3, s[8:11], 0 offen offset:336")
    a.label("K1_XEND")
    cmark(a, 4)
    a("s_endpgm")


def touch(a):
    mode = OPT.get("touch", 0)
    if not mode:
        return
    a("s_lshr_b32 s46, s2, 3")
    a("s_lshr_b32 s47, s4, 1")
    a("s_cmp_ge_u32 s3, 5")
    a("s_cbranch_scc1 K1_TW")
    a("s_and_b32 s48, s4, 1")
    a("s_lshl_b32 s48, s48, 5")
    a("s_add_u32 s48, s48, s46")
    a(f"s_mul_i32 s48, s48, {32*1152}")
    a("s_lshl_b32 s49, s3, 13")
    a("s_add_u32 s48, s48, s49")
    a("v_lshlrev_b32 v204, 7, v0")
    a("v_add_u32 v204, s48, v204")
    a("buffer_load_dword v204, v204, s[8:11], 0 offen")
    a("s_cmp_ge_u32 s3, 2")
    a("s_cbranch_scc1 K1_TD")
    a("s_mul_i32 s48, s46, 9")
    a("s_lshr_b32 s48, s48, 1")
    a("s_mul_i32 s49, s47, 144")
    a("s_add_u32 s48, s48, s49")
    a("s_mul_i32 s48, s48, 1152")
    a("v_min_u32 v205, 44, v0")
    a("v_lshlrev_b32 v205, 7, v205")
    a("v_add_u32 v205, s48, v205")
    a("s_cmp_eq_u32 s3, 1")
    a("s_cbranch_scc1 K1_TI")
    a("buffer_load_dword v205, v205, s[16:19], 0 offen")
    a("s_branch K1_TD")
    a.label("K1_TI")
    a("buffer_load_dword v205, v205, s[20:23], 0 offen")
    a("s_branch K1_TD")
    a.label("K1_TW")
    a("s_mul_i32 s48, s46, 18")
    a("s_mul_i32 s49, s3, 6")
    a("s_add_u32 s48, s48, s49")
    a("s_sub_u32 s48, s48, 30")
    a("v_lshrrev_b32 v204, 3, v0")
    a("v_min_u32 v204, 5, v204")
    a("v_add_u32 v204, s48, v204")
    a("v_mul_u32_u24 v204, 3456, v204")
    a("s_mul_i32 s48, s47, 864")
    a("s_and_b32 s48, s48, 0xffffff80")
    a("v_and_b32 v205, 7, v0")
    a("v_lshl_add_u32 v204, v205, 7, v204")
    a("v_add_u32 v204, s48, v204")
    a("buffer_load_dword v204, v204, s[12:15], 0 offen")
    a.label("K1_TD")


def gen_k1(a):
    a.label("k1_kernel")
    a("s_cmp_ge_u32 s2, 256")
    a("s_cbranch_scc1 K1_END")
    ldptr(a, 8, "A_x")
    ldptr(a, 12, "wqkv")
    ldptr(a, 16, "B_re")
    ldptr(a, 20, "B_im")
    ldptr(a, 24, "gate_w")
    ldptr(a, 28, "ws")
    a("v_lshrrev_b32 v1, 6, v0")
    a("v_and_b32 v0, 63, v0")
    a("v_readfirstlane_b32 s3, v1")
    srd_tail(a, 8, SZ_X)
    srd_tail(a, 12, SZ_WQKV)
    srd_tail(a, 16, SZ_SQ)
    srd_tail(a, 20, SZ_SQ)
    srd_tail(a, 24, SZ_VEC)
    srd_tail(a, 28, WS_REC)
    a("s_and_b32 s4, s2, 7")
    a("s_lshr_b32 s5, s2, 3")
    a("s_and_b32 s6, s4, 1")
    a("s_lshl_b32 s6, s6, 3")
    a("s_and_b32 s7, s5, 7")
    a("s_add_u32 s6, s6, s7")
    a("s_lshr_b32 s7, s4, 1")
    a("s_lshl_b32 s7, s7, 2")
    a("s_lshr_b32 s5, s5, 3")
    a("s_add_u32 s7, s7, s5")
    a("s_waitcnt lgkmcnt(0)")
    touch(a)
    a("s_cmp_lt_u32 s3, 4")
    a("s_cbranch_scc1 K1_CONS")
    a("s_cmp_eq_u32 s3, 5")
    a("s_cbranch_scc1 K1_L1")
    a("s_cmp_eq_u32 s3, 6")
    a("s_cbranch_scc1 K1_L2")
    a("s_cmp_eq_u32 s3, 7")
    a("s_cbranch_scc1 K1_L3")
    for lw in range(4):
        loader(a, lw)
    a.label("K1_CONS")
    for r in range(4):
        a(f"s_mov_b32 s{8+r}, s{28+r}")
    a("s_and_b32 s5, s3, 1")
    a("s_cmp_ge_u32 s3, 2")
    a("s_cbranch_scc1 K1_ROLE_X")
    role_t(a)
    role_x(a)
    a.label("K1_END")
    a("s_endpgm")
```

```python
from asmlib import Asm, vr, sr
from layout import *
from n1 import fhex, ldptr, srd_tail
import stamp

QM, QR, GV, DV, NEGM, S0, S1, O, PB = 4, 8, 10, 11, 16, 32, 48, 64, 80
KM = (88, 92)
KR = (96, 100)
V0, V1 = 104, 108
UNROLL = 8
NROUND = 19
LDS_K2 = NROUND * 8 * 1024
VGPRS = 168
THREADS = 768

JE = 16
JOWN, JLAM, JU = 80, 82, 84
JA0, JA1 = 100, 101
JT = 102
CF = 116
CA0, CA1 = 12, 13
OPT = {}

S_W, S_HEAD, S_T, S_QOFF, S_SRC, S_M0, S_IT, S_ROLE, S_BLK = 3, 4, 5, 6, 7, 20, 21, 22, 23
S_A, S_B, S_C = 31, 32, 33


def pmark(a, name):
    pts = OPT.get("marks", ("b1", "t32", "job", "end"))
    if name in pts:
        stamp.mark(a, pts.index(name) + 1)


def mf(a, d, x, y, c):
    cs = c if isinstance(c, str) else vr(c, 16)
    a(f"v_mfma_f32_32x32x16_bf16 {vr(d,16)}, {vr(x,4)}, {vr(y,4)}, {cs}")


def mf8(a, d, x, y, c):
    cs = c if isinstance(c, str) else vr(c, 16)
    a(f"v_mfma_f32_32x32x8_bf16 {vr(d,16)}, {vr(x,2)}, {vr(y,2)}, {cs}")


def body(a, u):
    cur = S0 if (u & 1) == 0 else S1
    nxt = S1 if (u & 1) == 0 else S0
    kb = (u + 1) & 1
    a("s_waitcnt lgkmcnt(2)")
    mf(a, nxt, KM[kb], QM, "0")
    for i in range(8):
        a(f"v_exp_f32 v{cur+i}, v{cur+i}")
    mf8(a, nxt, KR[kb], QR, nxt)
    for i in range(4):
        a(f"v_cvt_pk_bf16_f32 v{PB+i}, v{cur+2*i}, v{cur+2*i+1}")
    a(f"ds_read_b128 {vr(KM[u&1],4)}, v1 offset:{(u+2)*KVBLOB}")
    a(f"ds_read_b32 v{KR[u&1]}, v2 offset:{(u+2)*KVBLOB}")
    a("s_waitcnt lgkmcnt(3)")
    mf(a, O, V0, PB, O)
    for i in range(8, 16):
        a(f"v_exp_f32 v{cur+i}, v{cur+i}")
    for i in range(4, 8):
        a(f"v_cvt_pk_bf16_f32 v{PB+i}, v{cur+2*i}, v{cur+2*i+1}")
    a(f"ds_read_b128 {vr(V0,4)}, v3 offset:{(u+1)*KVBLOB}")
    a("s_waitcnt lgkmcnt(3)")
    mf(a, O, V1, PB + 4, O)
    a(f"ds_read_b128 {vr(V1,4)}, v3 offset:{(u+1)*KVBLOB + 608}")


def lds_addr(a):
    a("v_lshlrev_b32 v1, 4, v0")
    a("v_and_b32 v12, 31, v0")
    a("v_lshlrev_b32 v2, 2, v12")
    a("v_add_u32 v2, 1024, v2")
    a("v_lshlrev_b32 v3, 4, v12")
    a("v_lshrrev_b32 v13, 5, v0")
    a("v_mul_u32_u24 v13, 304, v13")
    a("v_add_u32 v3, v3, v13")
    a("v_add_u32 v3, 1152, v3")
    a("v_mov_b32 v13, 0x30000")
    a("v_cmp_gt_u32 vcc, 19, v12")
    a("s_nop 1")
    a("v_cndmask_b32 v3, v13, v3, vcc")
    a("v_cmp_gt_u32 vcc, 32, v0")
    a("s_nop 1")
    a("v_cndmask_b32 v2, v13, v2, vcc")


def cfma(a, dr, di, lr, li, hr, hi, ur, ui):
    a(f"v_fma_f32 v{dr}, v{lr}, v{hr}, v{ur}")
    a(f"v_fma_f32 v{di}, v{lr}, v{hi}, v{ui}")
    a(f"v_fma_f32 v{dr}, -v{li}, v{hi}, v{dr}")
    a(f"v_fma_f32 v{di}, v{li}, v{hr}, v{di}")


def csq(a, dr, di, sr_, si):
    a(f"v_mul_f32 v{dr}, v{si}, v{si}")
    a(f"v_mul_f32 v{di}, v{sr_}, v{si}")
    a(f"v_fma_f32 v{dr}, v{sr_}, v{sr_}, -v{dr}")
    a(f"v_add_f32 v{di}, v{di}, v{di}")


def scan_loads(a, n):
    a(f"buffer_load_dwordx2 {vr(JLAM,2)}, v{JA1}, s[8:11], s{S_C} offen")
    a(f"s_mov_b32 s14, {SZ_E}")
    a(f"buffer_load_dwordx2 {vr(JOWN,2)}, v{JA0}, s[12:15], s{S_A} offen")
    a("v_lshlrev_b32 v14, 5, v0")
    for part in range(2):
        a(f"s_add_u32 s34, s{S_B}, {part*73728}")
        a(f"buffer_load_dwordx4 {vr(JU+8*part,4)}, v14, s[8:11], s34 offen")
        a(f"buffer_load_dwordx4 {vr(JU+8*part+4,4)}, v14, s[8:11], s34 offen offset:16")
    for k in range(8):
        a(f"s_cmp_le_u32 s{S_BLK}, {4*k}")
        a(f"s_cbranch_scc1 {n}_SL")
        for e in range(4):
            m = 4 * k + e
            a(f"s_sub_u32 s{S_A}, s{S_A}, 18432")
            a(f"s_cmp_gt_u32 s{S_BLK}, {m}")
            a(f"s_cselect_b32 s14, {SZ_E}, 0")
            a(f"buffer_load_dwordx2 {vr(JE+2*m,2)}, v{JA0}, s[12:15], s{S_A} offen")
    a.label(f"{n}_SL")


def scan_job(a, n):
    lr, li = JLAM, JLAM + 1
    t = JT
    csq(a, t, t + 1, lr, li)
    csq(a, t + 2, t + 3, t, t + 1)
    csq(a, t + 4, t + 5, t + 2, t + 3)
    csq(a, t, t + 1, t + 4, t + 5)
    csq(a, t + 4, t + 5, t, t + 1)
    csq(a, t + 2, t + 3, t + 4, t + 5)
    A = t + 4
    a(f"v_mov_b32 v{A}, 0")
    a(f"v_mov_b32 v{A+1}, 0")
    for k in range(7, -1, -1):
        a(f"s_cmp_le_u32 s{S_BLK}, {4*k}")
        a(f"s_cbranch_scc1 {n}_SH{k}")
        src = A
        for e in range(3, -1, -1):
            m = 4 * k + e
            dst = JE + 2 * m if e else A
            cfma(a, dst, dst + 1, t + 2, t + 3, src, src + 1, JE + 2 * m, JE + 2 * m + 1)
            src = dst
        a.label(f"{n}_SH{k}")
    B = t + 6
    H = [t + 8, t + 10]
    a("s_nop 1")
    a(f"v_mov_b32_dpp v{H[0]}, v{A} quad_perm:[0,0,0,0] row_mask:0xf bank_mask:0xf")
    a(f"v_mov_b32_dpp v{H[0]+1}, v{A+1} quad_perm:[0,0,0,0] row_mask:0xf bank_mask:0xf")
    cur = 0
    for s in range(1, 4):
        a(f"v_mov_b32_dpp v{B}, v{A} quad_perm:[{s},{s},{s},{s}] row_mask:0xf bank_mask:0xf")
        a(f"v_mov_b32_dpp v{B+1}, v{A+1} quad_perm:[{s},{s},{s},{s}] row_mask:0xf bank_mask:0xf")
        cfma(a, H[cur ^ 1], H[cur ^ 1] + 1, t, t + 1, H[cur], H[cur] + 1, B, B + 1)
        cur ^= 1
    C = H[cur]
    P = [JE, JE + 2, JE + 4]
    prev = C
    for s in range(3):
        a(f"v_mov_b32_dpp v{B}, v{JOWN} quad_perm:[{s},{s},{s},{s}] row_mask:0xf bank_mask:0xf")
        a(f"v_mov_b32_dpp v{B+1}, v{JOWN+1} quad_perm:[{s},{s},{s},{s}] row_mask:0xf bank_mask:0xf")
        cfma(a, P[s], P[s] + 1, t, t + 1, prev, prev + 1, B, B + 1)
        prev = P[s]
    for s, mk in enumerate((0xEEEEEEEE, 0xCCCCCCCC, 0x88888888)):
        a(f"s_mov_b32 s34, {hex(mk)}")
        a(f"s_mov_b32 s35, {hex(mk)}")
        a(f"v_cndmask_b32 v{C}, v{C}, v{P[s]}, s[34:35]")
        a(f"v_cndmask_b32 v{C+1}, v{C+1}, v{P[s]+1}, s[34:35]")
    hr, hi = C, C + 1
    W = JE + 8
    ur, ui = B, B + 1
    for s in range(16):
        for part, d in ((0, ur), (1, ui)):
            src = JU + 8 * part + (s >> 1)
            if s & 1:
                a(f"v_and_b32 v{d}, 0xffff0000, v{src}")
            else:
                a(f"v_lshlrev_b32 v{d}, 16, v{src}")
        cfma(a, W + s, W + 16 + s, lr, li, hr, hi, ur, ui)
        hr, hi = W + s, W + 16 + s
    for part in range(2):
        for i in range(8):
            a(f"v_cvt_pk_bf16_f32 v{JU+8*part+i}, v{W+16*part+2*i}, v{W+16*part+2*i+1}")
    for part in range(2):
        a(f"s_add_u32 s34, s{S_B}, {part*73728}")
        a(f"buffer_store_dwordx4 {vr(JU+8*part,4)}, v14, s[8:11], s34 offen")
        a(f"buffer_store_dwordx4 {vr(JU+8*part+4,4)}, v14, s[8:11], s34 offen offset:16")


def cf_loads(a):
    a(f"buffer_load_dwordx4 {vr(CF,4)}, v{CA0}, s[16:19], 0 offen")
    a(f"buffer_load_dwordx4 {vr(CF+4,4)}, v{CA0}, s[24:27], 0 offen")
    for i in range(4):
        a(f"buffer_load_dwordx4 {vr(CF+8+4*i,4)}, v{CA1}, s[8:11], s36 offen offset:{1152*i}")


def cf_job(a):
    t = JT
    for j in range(8):
        fr, fi = CF + 8 + 2 * j, CF + 9 + 2 * j
        cr, ci = t + 4 * (j & 1), t + 4 * (j & 1) + 1
        ore, oim = CF + 24 + j, CF + 32 + j
        for part, d in ((0, cr), (1, ci)):
            src = CF + 4 * part + (j >> 1)
            if j & 1:
                a(f"v_and_b32 v{d}, 0xffff0000, v{src}")
            else:
                a(f"v_lshlrev_b32 v{d}, 16, v{src}")
        a(f"v_mul_f32 v{ore}, v{cr}, v{fr}")
        a(f"v_mul_f32 v{oim}, v{cr}, v{fi}")
        a(f"v_fma_f32 v{ore}, -v{ci}, v{fi}, v{ore}")
        a(f"v_fma_f32 v{oim}, -v{ci}, v{fr}, -v{oim}")
    for part in range(2):
        for i in range(4):
            a(f"v_cvt_pk_bf16_f32 v{CF+4*part+i}, v{CF+24+8*part+2*i}, v{CF+25+8*part+2*i}")
    a(f"s_mov_b32 s34, {OFF_CF}")
    a(f"s_mov_b32 s35, {OFF_CF + 576*576*2}")
    a(f"buffer_store_dwordx4 {vr(CF,4)}, v{CA0}, s[8:11], s34 offen")
    a(f"buffer_store_dwordx4 {vr(CF+4,4)}, v{CA0}, s[8:11], s35 offen")


def scan_addr(a, chg):
    a(f"s_lshl_b32 s37, s{chg}, 9")
    a(f"v_lshlrev_b32 v{JA0}, 3, v0")
    a(f"v_add_u32 v{JA0}, s37, v{JA0}")
    a(f"v_lshrrev_b32 v{JA1}, 2, v0")
    a(f"v_lshlrev_b32 v{JA1}, 3, v{JA1}")
    a(f"s_mul_i32 s{S_A}, s{S_BLK}, 18432")
    a(f"s_mul_i32 s{S_B}, s{S_BLK}, 147456")
    a(f"s_lshl_b32 s37, s{chg}, 11")
    a(f"s_add_u32 s{S_B}, s{S_B}, s37")
    a(f"s_add_u32 s{S_B}, s{S_B}, {OFF_UT}")
    a(f"s_lshl_b32 s37, s{chg}, 7")
    a(f"s_add_u32 s{S_C}, s37, {OFF_LAM}")


def helper(a):
    a.label("K2_HELP")
    a(f"s_sub_u32 s{S_W}, s{S_W}, 8")
    a(f"s_mul_i32 s7, s4, {64*KVBLOB}")
    a(f"s_lshl_b32 s20, s{S_W}, 11")
    a("s_add_u32 s7, s7, s20")
    a(f"s_add_u32 s7, s7, {OFF_KV}")
    a(f"v_lshlrev_b32 v{DV}, 4, v0")
    a("s_waitcnt lgkmcnt(0)")

    def rounds(n):
        for r in range(n):
            a(f"s_mov_b32 m0, s{S_M0}")
            a(f"s_add_u32 s39, s{S_SRC}, 1024")
            a(f"buffer_load_dwordx4 v{DV}, s[8:11], s{S_SRC} offen lds")
            a(f"s_add_u32 m0, s{S_M0}, 1024")
            a(f"s_add_u32 s{S_M0}, s{S_M0}, 8192")
            a(f"buffer_load_dwordx4 v{DV}, s[8:11], s39 offen lds")
            a(f"s_add_u32 s{S_SRC}, s{S_SRC}, 8192")
    n1, n2 = OPT.get("n1", 6), OPT.get("n2", 13)
    rounds(n1)
    a(f"s_add_u32 s12, s12, {OFF_E}")
    a("s_addc_u32 s13, s13, 0")
    a(f"s_waitcnt vmcnt({2*(n1-3)})")
    pmark(a, "h1")
    a("s_barrier")
    rounds(n2 - n1)
    a(f"s_waitcnt vmcnt({2*(n2-6)})")
    pmark(a, "h2")
    a("s_barrier")
    rounds(NROUND - n2)
    a("s_waitcnt vmcnt(0)")
    pmark(a, "h3")
    a("s_barrier")
    a("s_and_b32 s28, s2, 7")
    a("s_lshr_b32 s29, s2, 3")
    a("s_lshr_b32 s30, s28, 1")
    a("s_mul_i32 s30, s30, 9")
    a("s_and_b32 s28, s28, 1")
    a("s_mul_i32 s38, s28, 5")
    a("s_add_u32 s38, s38, s30")
    a(f"s_add_u32 s38, s38, s{S_W}")
    a(f"s_mov_b32 s{S_BLK}, s29")
    scan_addr(a, 38)
    scan_loads(a, "K2J0")
    a(f"s_mov_b32 s{S_ROLE}, 0")
    a(f"s_cmp_eq_u32 s{S_W}, 0")
    a("s_cbranch_scc1 K2_JNOCF")
    a("s_mul_i32 s36, s2, 3")
    a(f"s_add_u32 s36, s36, s{S_W}")
    a("s_sub_u32 s36, s36, 1")
    a("s_cmp_ge_u32 s36, 648")
    a("s_cbranch_scc1 K2_JNOCF")
    a(f"s_mov_b32 s{S_ROLE}, 2")
    a("s_lshl_b32 s36, s36, 6")
    a("v_add_u32 v15, s36, v0")
    a(f"v_lshlrev_b32 v{CA0}, 4, v15")
    a(f"v_mul_u32_u24 v{CA1}, 58255, v15")
    a(f"v_lshrrev_b32 v{CA1}, 22, v{CA1}")
    a(f"v_mul_u32_u24 v{CA1}, 72, v{CA1}")
    a(f"v_sub_u32 v{CA1}, v15, v{CA1}")
    a(f"v_lshlrev_b32 v{CA1}, 4, v{CA1}")
    a(f"s_mov_b32 s36, {OFF_F2}")
    cf_loads(a)
    a.label("K2_JNOCF")
    a("s_waitcnt vmcnt(0)")
    pmark(a, "jl")
    a(f"s_setprio {OPT.get('jprio', 2)}")
    scan_job(a, "K2J0")
    a(f"s_cmp_eq_u32 s{S_ROLE}, 2")
    a("s_cbranch_scc0 K2_JX")
    cf_job(a)
    pmark(a, "job")
    a("s_endpgm")
    a.label("K2_JX")
    a(f"s_cmp_lg_u32 s{S_W}, 0")
    a("s_cbranch_scc1 K2_JEND")
    a("s_cmp_ge_u32 s29, 16")
    a("s_cbranch_scc1 K2_JEND")
    a("s_setprio 0")
    a("s_add_u32 s38, s30, 4")
    a("s_lshl_b32 s28, s28, 4")
    a(f"s_add_u32 s{S_BLK}, s29, s28")
    scan_addr(a, 38)
    scan_loads(a, "K2J1")
    a("s_waitcnt vmcnt(0)")
    a(f"s_setprio {OPT.get('jprio', 2)}")
    scan_job(a, "K2J1")
    a.label("K2_JEND")
    pmark(a, "job")
    a("s_endpgm")


PRIO = {"A": "00000000", "B": "11101110"}


def prio(a, rl, u):
    pat = OPT.get(f"p{rl}", PRIO[rl])
    if set(pat) == {"0"}:
        return
    if u == 0 or pat[u] != pat[u - 1]:
        a(f"s_setprio {pat[u]}")


def attn_loops(a, rl):
    n = f"K2{rl}"
    a.label(f"{n}_LOOP")
    a(f"s_sub_u32 s34, s{S_IT}, 1")
    a("s_cmp_lt_u32 s34, 2")
    a(f"s_cbranch_scc0 {n}_NOB")
    if "a8" in OPT.get("marks", ()):
        a("s_cmp_eq_u32 s34, 0")
        a(f"s_cbranch_scc0 {n}_M1")
        pmark(a, "a8")
        a("s_barrier")
        pmark(a, "t8")
        a(f"s_branch {n}_NOB")
        a.label(f"{n}_M1")
        pmark(a, "a16")
        a("s_barrier")
        pmark(a, "t16")
    else:
        a("s_barrier")
    a.label(f"{n}_NOB")
    if "t32" in OPT.get("marks", ()):
        a(f"s_cmp_eq_u32 s{S_IT}, 4")
        a(f"s_cbranch_scc0 {n}_M2")
        pmark(a, "t32")
        a.label(f"{n}_M2")
    for u in range(UNROLL):
        prio(a, rl, u)
        body(a, u)
    for r in (1, 2, 3):
        a(f"v_add_u32 v{r}, {UNROLL*KVBLOB}, v{r}")
    a(f"s_add_u32 s{S_IT}, s{S_IT}, 1")
    a(f"s_cmp_lt_u32 s{S_IT}, {64//UNROLL}")
    a(f"s_cbranch_scc1 {n}_LOOP")
    if rl == "A":
        a("s_branch K2_DONE")


def gen_k2(a):
    assert all((i * 58255) >> 22 == i // 72 for i in range(41472))
    a.label("k2_kernel")
    a("s_cmp_ge_u32 s2, 256")
    a("s_cbranch_scc1 K2_END")
    ldptr(a, 8, "ws")
    ldptr(a, 12, "ws")
    ldptr(a, 16, "C_re")
    ldptr(a, 24, "C_im")
    a("v_lshrrev_b32 v1, 6, v0")
    a("v_and_b32 v0, 63, v0")
    a(f"v_readfirstlane_b32 s{S_W}, v1")
    srd_tail(a, 8, WS_REC)
    srd_tail(a, 12, SZ_E)
    srd_tail(a, 16, SZ_SQ)
    srd_tail(a, 24, SZ_SQ)
    a("s_and_b32 s4, s2, 7")
    a("s_lshl_b32 s4, s4, 2")
    a("s_lshr_b32 s5, s2, 3")
    a("s_and_b32 s6, s5, 3")
    a("s_add_u32 s4, s4, s6")
    a("s_lshr_b32 s5, s2, 5")
    a("s_lshl_b32 s5, s5, 3")
    a("s_add_u32 s5, s5, s3")
    a("s_lshl_b32 s6, s4, 6")
    a("s_add_u32 s6, s6, s5")
    a(f"s_mul_i32 s6, s6, {QBLOB}")
    a(f"s_cmp_ge_u32 s{S_W}, 8")
    a("s_cbranch_scc1 K2_HELP")
    lds_addr(a)
    a(f"v_lshlrev_b32 v{DV}, 4, v0")
    a("v_lshlrev_b32 v14, 2, v12")
    a("s_lshl_b32 s36, s5, 7")
    a(f"s_add_u32 s36, s36, {OFF_G}")
    a("s_waitcnt lgkmcnt(0)")
    a(f"buffer_load_dwordx4 {vr(QM,4)}, v{DV}, s[8:11], s6 offen")
    a(f"buffer_load_dword v{QR}, v14, s[8:11], s6 offen offset:1024")
    a(f"buffer_load_dword v{GV}, v14, s[8:11], s36 offen")
    a(f"v_mov_b32 v{QR+1}, 0")
    a(f"v_mov_b32 v{KR[0]+1}, 0")
    a(f"v_mov_b32 v{KR[1]+1}, 0")
    for r in range(16):
        a(f"v_mov_b32 v{O+r}, 0")
    a("s_waitcnt vmcnt(0)")
    a("v_cmp_gt_u32 vcc, 32, v0")
    a("s_nop 1")
    a(f"v_cndmask_b32 v{QR}, 0, v{QR}, vcc")
    a("s_barrier")
    pmark(a, "b1")
    a(f"ds_read_b128 {vr(KM[0],4)}, v1")
    a(f"ds_read_b32 v{KR[0]}, v2")
    a("s_waitcnt lgkmcnt(0)")
    mf(a, S0, KM[0], QM, "0")
    mf8(a, S0, KR[0], QR, S0)
    a(f"ds_read_b128 {vr(KM[1],4)}, v1 offset:{KVBLOB}")
    a(f"ds_read_b32 v{KR[1]}, v2 offset:{KVBLOB}")
    a(f"ds_read_b128 {vr(V0,4)}, v3")
    a(f"ds_read_b128 {vr(V1,4)}, v3 offset:608")
    a(f"s_mov_b32 s{S_IT}, 0")
    a("s_nop 6")
    a(f"s_cmp_ge_u32 s{S_W}, 4")
    a("s_cbranch_scc1 K2B_LOOP")
    for rl in "AB":
        attn_loops(a, rl)
    a.label("K2_DONE")
    pmark(a, "end")
    a("s_waitcnt lgkmcnt(0)")
    a("s_nop 10")
    a(f"v_mov_b32 v12, v{O+10}")
    a(f"v_mov_b32 v13, v{O+10}")
    a("s_nop 1")
    a("v_permlane32_swap_b32 v12, v13")
    a(f"v_max3_f32 v14, |v{O}|, |v{O+1}|, |v{O+2}|")
    for i in range(3, 9, 2):
        a(f"v_max3_f32 v14, v14, |v{O+i}|, |v{O+i+1}|")
    a(f"v_max_f32_e64 v14, v14, |v{O+9}|")
    a(f"s_mov_b32 s34, {fhex(2.0**-80)}")
    a(f"s_mov_b32 s35, {fhex(2.0**110)}")
    a(f"s_mov_b32 s36, {fhex(2.0**126)}")
    a("v_cmp_le_f32 vcc, s34, v12")
    a("v_cmp_ge_f32 s[28:29], s35, v12")
    a("s_and_b64 vcc, vcc, s[28:29]")
    a("v_cmp_ge_f32 s[28:29], s36, v14")
    a("s_and_b64 vcc, vcc, s[28:29]")
    a("s_cmp_eq_u64 vcc, -1")
    a("s_cbranch_scc0 K2_FB")
    a.label("K2_OUT")
    a("v_rcp_f32 v12, v12")
    a(f"v_sub_f32 v13, 1.0, v{GV}")
    a("v_mul_f32 v12, v12, v13")
    for i in range(10):
        a(f"v_mul_f32 v{O+i}, v{O+i}, v12")
    for i in range(5):
        a(f"v_cvt_pk_bf16_f32 v{PB+i}, v{O+2*i}, v{O+2*i+1}")
    a("s_lshr_b32 s6, s5, 1")
    a("s_mul_i32 s6, s6, 73728")
    a("s_and_b32 s7, s5, 1")
    a("s_lshl_b32 s7, s7, 9")
    a("s_add_u32 s6, s6, s7")
    a(f"s_add_u32 s6, s6, {OFF_OF}")
    a("s_lshr_b32 s7, s4, 2")
    a("s_and_b32 s34, s4, 3")
    a("s_lshl_b32 s35, s7, 13")
    a("s_lshl_b32 s36, s34, 11")
    a("s_add_u32 s35, s35, s36")
    a("s_add_u32 s35, s35, s6")
    a("v_and_b32 v2, 31, v0")
    a("v_lshlrev_b32 v2, 4, v2")
    a("v_lshrrev_b32 v1, 5, v0")
    a("v_lshl_add_u32 v1, v1, 10, v2")
    a(f"buffer_store_dwordx4 {vr(PB,4)}, v1, s[8:11], s35 offen")
    a("s_lshl_b32 s7, s7, 10")
    a("s_lshl_b32 s34, s34, 2")
    a("s_add_u32 s7, s7, s34")
    a("s_add_u32 s7, s7, s6")
    a("s_add_u32 s7, s7, 65536")
    a("s_mov_b32 exec_hi, 0")
    a(f"buffer_store_dword v{PB+4}, v2, s[8:11], s7 offen")
    a("s_endpgm")

    helper(a)

    a.label("K2_FB")
    lds_addr(a)
    a("v_mov_b32 v15, 0xff800000")
    a(f"s_mov_b32 s{S_IT}, 0")
    a.label("K2_MAX")
    a(f"ds_read_b128 {vr(KM[0],4)}, v1")
    a(f"ds_read_b32 v{KR[0]}, v2")
    a("s_waitcnt lgkmcnt(0)")
    mf(a, S0, KM[0], QM, "0")
    mf8(a, S0, KR[0], QR, S0)
    a(f"v_add_u32 v1, {KVBLOB}, v1")
    a(f"v_add_u32 v2, {KVBLOB}, v2")
    a("s_nop 10")
    for i in range(0, 16, 2):
        a(f"v_max3_f32 v15, v15, v{S0+i}, v{S0+i+1}")
    a(f"s_add_u32 s{S_IT}, s{S_IT}, 1")
    a(f"s_cmp_lt_u32 s{S_IT}, 64")
    a("s_cbranch_scc1 K2_MAX")
    a("v_mov_b32 v14, v15")
    a("s_nop 1")
    a("v_permlane32_swap_b32 v14, v15")
    a("v_max_f32 v14, v14, v15")
    for r in range(16):
        a(f"v_sub_f32 v{NEGM+r}, 0, v14")
        a(f"v_mov_b32 v{O+r}, 0")
    lds_addr(a)
    a(f"s_mov_b32 s{S_IT}, 0")
    a.label("K2_FB2")
    a(f"ds_read_b128 {vr(KM[0],4)}, v1")
    a(f"ds_read_b32 v{KR[0]}, v2")
    a(f"ds_read_b128 {vr(V0,4)}, v3")
    a(f"ds_read_b128 {vr(V1,4)}, v3 offset:608")
    a("s_waitcnt lgkmcnt(0)")
    mf(a, S0, KM[0], QM, NEGM)
    mf8(a, S0, KR[0], QR, S0)
    for r in (1, 2, 3):
        a(f"v_add_u32 v{r}, {KVBLOB}, v{r}")
    a("s_nop 10")
    for i in range(16):
        a(f"v_exp_f32 v{S0+i}, v{S0+i}")
    a("s_nop 0")
    for i in range(8):
        a(f"v_cvt_pk_bf16_f32 v{PB+i}, v{S0+2*i}, v{S0+2*i+1}")
    a("s_nop 1")
    mf(a, O, V0, PB, O)
    mf(a, O, V1, PB + 4, O)
    a(f"s_add_u32 s{S_IT}, s{S_IT}, 1")
    a(f"s_cmp_lt_u32 s{S_IT}, 64")
    a("s_cbranch_scc1 K2_FB2")
    a("s_nop 10")
    a(f"v_mov_b32 v12, v{O+10}")
    a(f"v_mov_b32 v13, v{O+10}")
    a("s_nop 1")
    a("v_permlane32_swap_b32 v12, v13")
    a("s_branch K2_OUT")
    a.label("K2_END")
    a("s_endpgm")
```

```python
from asmlib import Asm, vr, sr
from layout import *
from n1 import fhex, ldptr, srd_tail
import stamp

SLOT = 17408
W_OFF = 8192
PITCH = 304
OPT = {}
VGPRS = 152
THREADS = 512


def nslot():
    return OPT.get("nslot", 4)


def stage_off():
    return nslot() * SLOT


def lds_size():
    return stage_off() + 64 * PITCH


LDS_K3 = 4 * SLOT + 64 * PITCH

ACC = 16
FR = (48, 88)
GV = 40


def pmark(a, name):
    pts = OPT.get("marks", ("b0", "y", "end", "st"))
    if name in pts:
        stamp.mark(a, pts.index(name) + 1)


VA, VW, VL, VO, VR = 2, 4, 7, 8, 11
S_SLOT, S_CY, S_CO, S_C = 40, 41, 42, 44


def wq(lw):
    return [2 * lw, 2 * lw + 1] + ([8] if lw == 3 else [])


def issue_y(a, lw):
    a(f"s_lshl_b32 s46, s{S_CY}, 13")
    a("s_add_u32 s46, s46, s30")
    a(f"s_lshl_b32 s47, s{S_CY}, 7")
    a(f"s_cmp_ge_u32 s{S_CY}, 9")
    a(f"s_cselect_b32 s48, {663552 - 9*128}, 0")
    a("s_add_u32 s47, s47, s48")
    a(f"s_add_u32 s47, s47, {OFF_CF}")
    for i in range(2):
        a(f"s_add_u32 m0, s{S_SLOT}, {(2*lw+i)*1024}")
        a("s_nop 0")
        a(f"buffer_load_dwordx4 v{VA+i}, s[8:11], s46 offen lds")
    for i, q in enumerate(wq(lw)):
        a(f"s_add_u32 m0, s{S_SLOT}, {W_OFF + q*1024}")
        a("s_nop 0")
        a(f"buffer_load_dwordx4 v{VW+i}, s[8:11], s47 offen lds")
    a(f"s_add_u32 s{S_CY}, s{S_CY}, 1")
    a(f"s_cmp_eq_u32 s{S_CY}, 18")
    a(f"s_cselect_b32 s{S_CY}, 0, s{S_CY}")


def issue_o(a, lw, tag):
    a(f"s_lshl_b32 s46, s{S_CO}, 13")
    a("s_add_u32 s46, s46, s31")
    for i in range(2):
        a(f"s_add_u32 m0, s{S_SLOT}, {(2*lw+i)*1024}")
        if i:
            a("s_add_u32 s46, s46, 1024")
        else:
            a("s_nop 0")
        a(f"buffer_load_dwordx4 v{VL}, s[8:11], s46 offen lds")
    a(f"s_mul_i32 s47, s{S_CO}, {72*1152}")
    a(f"s_cmp_eq_u32 s{S_CO}, 8")
    a(f"s_cbranch_scc1 K3_L{lw}_R{tag}")
    for i, q in enumerate(wq(lw)):
        a(f"s_add_u32 m0, s{S_SLOT}, {W_OFF + q*1024}")
        a("s_nop 0")
        a(f"buffer_load_dwordx4 v{VO+i}, s[12:15], s47 offen lds")
    a(f"s_branch K3_L{lw}_N{tag}")
    a.label(f"K3_L{lw}_R{tag}")
    for i, q in enumerate(wq(lw)):
        a(f"s_add_u32 m0, s{S_SLOT}, {W_OFF + q*1024}")
        a("s_nop 0")
        a(f"buffer_load_dwordx4 v{VR+i}, s[12:15], 0 offen lds")
    a.label(f"K3_L{lw}_N{tag}")
    a(f"s_add_u32 s{S_CO}, s{S_CO}, 1")
    a(f"s_cmp_eq_u32 s{S_CO}, 9")
    a(f"s_cselect_b32 s{S_CO}, 0, s{S_CO}")


def next_slot(a):
    a(f"s_add_u32 s{S_SLOT}, s{S_SLOT}, {SLOT}")
    a(f"s_cmp_eq_u32 s{S_SLOT}, {SLOT*nslot()}")
    a(f"s_cselect_b32 s{S_SLOT}, 0, s{S_SLOT}")


def wo_offsets(a, lw):
    assert all((v * 7282) >> 16 == v // 9 for v in range(576))
    a("s_mul_i32 s46, s7, 144")
    for i, q in enumerate(wq(lw)):
        a(f"v_add_u32 v16, {64*q}, v0")
        a("v_mul_u32_u24 v17, 7282, v16")
        a("v_lshrrev_b32 v17, 16, v17")
        a("v_mul_u32_u24 v18, 9, v17")
        a("v_sub_u32 v16, v16, v18")
        a("v_lshl_add_u32 v16, v16, 4, s46")
        a("v_and_b32 v18, 1, v17")
        a("v_bfe_u32 v19, v17, 1, 2")
        a("v_lshl_add_u32 v19, v18, 2, v19")
        a("v_and_b32 v17, 56, v17")
        a("v_add_u32 v17, v17, v19")
        a("v_lshrrev_b32 v18, 4, v17")
        a("v_mul_u32_u24 v19, 18, v18")
        a("v_and_b32 v18, 1, v18")
        a("v_lshl_add_u32 v19, v18, 1, v19")
        a("v_bfe_u32 v18, v17, 2, 1")
        a("v_lshl_add_u32 v19, v18, 3, v19")
        a("v_bfe_u32 v18, v17, 3, 1")
        a("v_lshl_add_u32 v19, v18, 2, v19")
        a("v_and_b32 v18, 3, v17")
        a("v_add_u32 v19, v19, v18")
        a("v_mul_u32_u24 v19, 1152, v19")
        a(f"v_add_u32 v{VO+i}, v19, v16")
        a("v_lshrrev_b32 v18, 1, v17")
        a("v_mul_u32_u24 v19, 18, v18")
        a("v_and_b32 v18, 1, v18")
        a("v_xor_b32 v18, 1, v18")
        a("v_lshl_add_u32 v19, v18, 4, v19")
        a("v_and_b32 v18, 1, v17")
        a("v_add_u32 v19, v19, v18")
        a("v_mul_u32_u24 v19, 1152, v19")
        a(f"v_add_u32 v{VR+i}, v19, v16")


def loader(a, lw):
    LA = OPT.get("la", 3)
    n = 2 + len(wq(lw))
    a.label(f"K3_L{lw}")
    a("v_lshrrev_b32 v14, 3, v0")
    a("v_and_b32 v15, 7, v0")
    a("v_and_b32 v16, 6, v14")
    a("v_xor_b32 v16, v16, v15")
    a("v_lshrrev_b32 v17, 2, v14")
    a("v_and_b32 v18, 3, v14")
    a("v_lshl_add_u32 v17, v17, 3, v18")
    a("v_lshlrev_b32 v17, 7, v17")
    a("v_lshl_add_u32 v17, v16, 4, v17")
    a(f"v_add_u32 v{VA}, {16*lw*128}, v17")
    a(f"v_add_u32 v{VA+1}, {(16*lw+4)*128}, v17")
    a("v_xor_b32 v15, v15, v14")
    a("s_mul_i32 s46, s7, 72")
    a("v_add_u32 v14, s46, v14")
    a("v_mul_u32_u24 v14, 1152, v14")
    a("v_lshl_add_u32 v14, v15, 4, v14")
    for i, q in enumerate(wq(lw)):
        a(f"v_add_u32 v{VW+i}, {8*q*1152}, v14")
    a(f"v_lshlrev_b32 v{VL}, 4, v0")
    a(f"s_mul_i32 s30, s6, 147456")
    a(f"s_add_u32 s30, s30, {OFF_UT}")
    a(f"s_mul_i32 s31, s6, 73728")
    a(f"s_add_u32 s31, s31, {OFF_OF + lw*2048}")
    a(f"s_mov_b32 s{S_SLOT}, 0")
    a("s_waitcnt lgkmcnt(0)")
    for r in range(LA):
        issue_y(a, lw)
        next_slot(a)
    wo_offsets(a, lw)
    a("v_mul_u32_u24 v14, 3641, v0")
    a("v_lshrrev_b32 v14, 16, v14")
    a("v_mul_u32_u24 v15, 18, v14")
    a("v_sub_u32 v15, v0, v15")
    a(f"s_mov_b32 s{S_C}, 0")
    a.label(f"K3_L{lw}_LOOP")
    a(f"s_waitcnt vmcnt({(LA-1)*n})")
    if lw == 0 and "l0" in OPT.get("marks", ()):
        a(f"s_cmp_eq_u32 s{S_C}, 0")
        a("s_cbranch_scc0 K3_LM0")
        pmark(a, "l0")
        a.label("K3_LM0")
    a("s_barrier")
    a(f"s_cmp_ge_u32 s{S_C}, {18-LA}")
    a(f"s_cbranch_scc1 K3_L{lw}_O")
    issue_y(a, lw)
    a(f"s_branch K3_L{lw}_NX")
    a.label(f"K3_L{lw}_O")
    issue_o(a, lw, "a")
    a.label(f"K3_L{lw}_NX")
    next_slot(a)
    a(f"s_add_u32 s{S_C}, s{S_C}, 1")
    a(f"s_cmp_lt_u32 s{S_C}, {27-LA}")
    a(f"s_cbranch_scc1 K3_L{lw}_LOOP")
    a(f"s_lshl_b32 s46, s6, 6")
    a(f"s_add_u32 s46, s46, {16*lw}")
    a("v_add_u32 v16, s46, v14")
    a("v_mul_u32_u24 v17, 1152, v16")
    a("s_mul_i32 s47, s7, 144")
    a("v_lshl_add_u32 v18, v15, 3, s47")
    a("v_add_u32 v17, v17, v18")
    a("v_lshlrev_b32 v19, 2, v16")
    a("v_mul_u32_u24 v20, 2304, v16")
    a("v_lshl_add_u32 v20, v18, 1, v20")
    a(f"v_mul_u32_u24 v21, {PITCH}, v14")
    a("v_lshl_add_u32 v21, v15, 4, v21")
    a(f"v_add_u32 v21, {16*lw*PITCH}, v21")
    a(f"v_add_u32 v21, s33, v21")
    a("buffer_load_dwordx2 v[22:23], v18, s[20:23], 0 offen")
    a(f"s_mov_b32 s47, {OFF_G}")
    for i in range(6):
        a(f"buffer_load_dwordx2 v[{24+2*i}:{25+2*i}], v17, s[16:19], 0 offen offset:{(3*1152*i) % 4096}".replace(
            ", 0 offen", f", s{34+i} offen"))
        a(f"buffer_load_dword v{36+i}, v19, s[8:11], s47 offen offset:{12*i}")
    for r in range(LA - 1, -1, -1):
        a(f"s_waitcnt vmcnt({r*n + 13})")
        a("s_barrier")
    a("s_waitcnt vmcnt(0)")
    a("v_lshlrev_b32 v44, 16, v22")
    a("v_and_b32 v45, 0xffff0000, v22")
    a("v_lshlrev_b32 v46, 16, v23")
    a("v_and_b32 v47, 0xffff0000, v23")
    for i in range(6):
        t = 48 + 4 * i
        a(f"v_lshlrev_b32 v{t}, 16, v{24+2*i}")
        a(f"v_and_b32 v{t+1}, 0xffff0000, v{24+2*i}")
        a(f"v_lshlrev_b32 v{t+2}, 16, v{25+2*i}")
        a(f"v_and_b32 v{t+3}, 0xffff0000, v{25+2*i}")
        for r in range(4):
            a(f"v_mul_f32 v{t+r}, v{t+r}, v{44+r}")
    a("s_barrier")
    pmark(a, "stg")
    a("s_mov_b32 exec_hi, 0x003fffff")
    for i in range(6):
        a(f"ds_read_b128 {vr(72+4*i,4)}, v21 offset:{3*PITCH*i}")
    for i in range(6):
        if i == 5:
            a("s_mov_b32 exec_hi, 0")
            a("s_mov_b32 exec_lo, 0x3ffff")
        a(f"s_waitcnt lgkmcnt({5-i})")
        for r in range(4):
            a(f"v_fmac_f32 v{72+4*i+r}, v{36+i}, v{48+4*i+r}")
        a(f"s_mov_b32 s46, {3*2304*i}")
        a(f"buffer_store_dwordx4 {vr(72+4*i,4)}, v20, s[24:27], s46 offen")
    pmark(a, "st")
    a("s_endpgm")


def act(s, ks, tt):
    return FR[s] + 8 * ks + 4 * tt


def wt(s, ks, j):
    return FR[s] + 16 + 12 * ks + 4 * j


def reads(kind, s, nh):
    out = []
    nj = 3 if nh == 0 else 2
    for ks in range(2):
        for tt in range(2):
            if kind == "y":
                out.append(f"ds_read_b64_tr_b16 {vr(act(s,ks,tt),2)}, v{8+tt} offset:{ks*4096}")
                out.append(f"ds_read_b64_tr_b16 {vr(act(s,ks,tt)+2,2)}, v{8+tt} offset:{ks*4096+1024}")
            else:
                out.append(f"ds_read_b128 {vr(act(s,ks,tt),4)}, v12 offset:{ks*4096 + tt*256}")
        for j in range(nj):
            if kind == "y":
                out.append(f"ds_read_b128 {vr(wt(s,ks,j),4)}, v{10+ks} offset:{j*2048}")
            else:
                off = ks * 32 * 144 + 32 * j
                out.append(f"ds_read_b64_tr_b16 {vr(wt(s,ks,j),2)}, v13 offset:{off}")
                out.append(f"ds_read_b64_tr_b16 {vr(wt(s,ks,j)+2,2)}, v13 offset:{off+144}")
    return out


def mfmas(s, nh):
    out = []
    nj = 3 if nh == 0 else 2
    for ks in range(2):
        for j in range(nj):
            for tt in range(2):
                d = vr(ACC + 8 * j + 4 * tt, 4)
                out.append(f"v_mfma_f32_16x16x32_bf16 {d}, {vr(wt(s,ks,j),4)}, {vr(act(s,ks,tt),4)}, {d}")
    return out


def addr_update(a, kind):
    if kind == "y":
        for r in range(4):
            a(f"v_add_u32 v{8+r}, s21, v{2+r}")
    else:
        for r in range(2):
            a(f"v_add_u32 v{12+r}, s21, v{6+r}")
    a(f"s_add_u32 s21, s21, {SLOT}")
    a(f"s_cmp_eq_u32 s21, {SLOT*nslot()}")
    a("s_cselect_b32 s21, 0, s21")


def chunk(a, s, nh, nxt):
    a("s_waitcnt lgkmcnt(0)")
    m = mfmas(s, nh)
    if nxt is None:
        for x in m:
            a(x)
        return
    a(m[0])
    a(m[1])
    a("s_barrier")
    addr_update(a, nxt)
    rd = reads(nxt, s ^ 1, nh)
    rest = m[2:]
    per = -(-len(rd) // len(rest))
    for i, x in enumerate(rest):
        for r in rd[i * per:(i + 1) * per]:
            a(r)
        a(x)


def consumer(a, nh):
    n = f"K3_C{nh}"
    a.label(n)
    a("v_lshrrev_b32 v14, 4, v0")
    a("v_bfe_u32 v15, v0, 2, 2")
    a("v_and_b32 v16, 3, v0")
    a("v_lshrrev_b32 v17, 1, v14")
    a("v_lshlrev_b32 v17, 4, v17")
    a("v_and_b32 v18, 1, v14")
    a("v_lshl_add_u32 v19, v18, 2, v15")
    a("v_add_u32 v20, v17, v19")
    a("v_and_b32 v19, 6, v19")
    a("s_lshl_b32 s46, s5, 2")
    a("v_xor_b32 v19, s46, v19")
    a("v_lshrrev_b32 v21, 1, v16")
    a("v_add_u32 v19, v19, v21")
    a("v_lshlrev_b32 v19, 4, v19")
    a("v_lshl_add_u32 v19, v20, 7, v19")
    a("v_and_b32 v21, 1, v16")
    a("v_lshl_add_u32 v2, v21, 3, v19")
    a("v_xor_b32 v3, 32, v2")
    a("v_and_b32 v19, 15, v0")
    a("v_and_b32 v20, 3, v0")
    a("v_xor_b32 v20, v14, v20")
    a("v_lshlrev_b32 v20, 4, v20")
    a("v_bfe_u32 v21, v0, 2, 1")
    a("v_lshl_add_u32 v20, v21, 6, v20")
    a("v_lshl_add_u32 v20, v19, 7, v20")
    a(f"v_add_u32 v4, {W_OFF + (0 if nh == 0 else 3*2048)}, v20")
    a("v_xor_b32 v5, 64, v4")
    a("s_lshl_b32 s46, s5, 9")
    a("v_lshlrev_b32 v20, 4, v19")
    a("v_lshl_add_u32 v20, v14, 10, v20")
    a("v_add_u32 v6, s46, v20")
    a("v_lshl_add_u32 v17, v18, 3, v17")
    a("v_lshl_add_u32 v17, v15, 1, v17")
    a("v_mul_u32_u24 v17, 144, v17")
    a("v_lshl_add_u32 v17, v16, 3, v17")
    a(f"v_add_u32 v7, {W_OFF + (0 if nh == 0 else 96)}, v17")
    a("s_lshl_b32 s46, s6, 6")
    a("s_lshl_b32 s47, s5, 5")
    a("s_add_u32 s46, s46, s47")
    a("v_add_u32 v20, s46, v19")
    a("v_lshlrev_b32 v20, 2, v20")
    a(f"s_mov_b32 s46, {OFF_G}")
    a("s_waitcnt lgkmcnt(0)")
    a(f"buffer_load_dword v{GV}, v20, s[8:11], s46 offen")
    a(f"buffer_load_dword v{GV+1}, v20, s[8:11], s46 offen offset:64")
    a("s_lshl_b32 s47, s5, 5")
    a("v_add_u32 v19, s47, v19")
    a(f"v_mul_u32_u24 v19, {PITCH}, v19")
    a("v_lshl_add_u32 v19, v14, 4, v19")
    a(f"v_add_u32 v19, s33, v19")
    a(f"v_add_u32 v42, {0 if nh == 0 else 192}, v19")
    for r in range(24):
        a(f"v_mov_b32 v{ACC+r}, 0")
    for r in range(4):
        a(f"v_mov_b32 v{8+r}, v{2+r}")
    a(f"s_mov_b32 s21, {SLOT}")
    a("s_barrier")
    pmark(a, "b0")
    for r in reads("y", 0, nh):
        a(r)
    a("s_mov_b32 s20, 0")
    a.label(n + "_Y")
    chunk(a, 0, nh, "y")
    chunk(a, 1, nh, "y")
    a("s_add_u32 s20, s20, 1")
    a("s_cmp_lt_u32 s20, 8")
    a(f"s_cbranch_scc1 {n}_Y")
    chunk(a, 0, nh, "y")
    chunk(a, 1, nh, "o")
    pmark(a, "y")
    nj = 3 if nh == 0 else 2
    a("s_waitcnt vmcnt(0)")
    a("s_nop 4")
    for j in range(nj):
        for tt in range(2):
            for r in range(4):
                d = ACC + 8 * j + 4 * tt + r
                a(f"v_mul_f32 v{d}, v{GV+tt}, v{d}")
    a("s_mov_b32 s20, 0")
    a.label(n + "_O")
    chunk(a, 0, nh, "o")
    chunk(a, 1, nh, "o")
    a("s_add_u32 s20, s20, 1")
    a("s_cmp_lt_u32 s20, 4")
    a(f"s_cbranch_scc1 {n}_O")
    chunk(a, 0, nh, None)
    pmark(a, "end")
    a("s_nop 7")
    for j in range(nj):
        for tt in range(2):
            if nh == 1 and j == 1:
                a("s_mov_b32 exec_hi, 0")
            a(f"ds_write_b128 v42, {vr(ACC+8*j+4*tt,4)} offset:{tt*16*PITCH + 64*j}")
    a("s_waitcnt lgkmcnt(0)")
    a("s_barrier")
    a("s_endpgm")


def gen_k3(a):
    a.label("k3_kernel")
    a("s_cmp_ge_u32 s2, 256")
    a("s_cbranch_scc1 K3_END")
    ldptr(a, 8, "ws")
    ldptr(a, 12, "wo")
    ldptr(a, 16, "A_x")
    ldptr(a, 20, "Dskip")
    ldptr(a, 24, "out")
    a("v_lshrrev_b32 v1, 6, v0")
    a("v_and_b32 v0, 63, v0")
    a("v_readfirstlane_b32 s3, v1")
    srd_tail(a, 8, WS_REC)
    srd_tail(a, 12, SZ_SQ)
    srd_tail(a, 16, SZ_X)
    srd_tail(a, 20, SZ_VEC)
    srd_tail(a, 24, SZ_OUT)
    a("s_and_b32 s4, s2, 7")
    a("s_lshr_b32 s5, s2, 3")
    if OPT.get("map", "84") == "84":
        a("s_and_b32 s6, s4, 3")
        a("s_lshl_b32 s6, s6, 3")
        a("s_and_b32 s7, s5, 7")
        a("s_add_u32 s6, s6, s7")
        a("s_lshr_b32 s7, s4, 2")
        a("s_lshl_b32 s7, s7, 2")
        a("s_lshr_b32 s46, s5, 3")
        a("s_add_u32 s7, s7, s46")
    else:
        a("s_lshl_b32 s6, s4, 2")
        a("s_and_b32 s7, s5, 3")
        a("s_add_u32 s6, s6, s7")
        a("s_lshr_b32 s7, s5, 2")
    st = OPT.get("stag", 1)
    if st:
        a("s_add_u32 s46, s6, s7")
        a("s_mul_i32 s47, s46, 7282")
        a("s_lshr_b32 s47, s47, 16")
        a("s_mul_i32 s47, s47, 9")
        a(f"s_sub_u32 s{S_CO}, s46, s47")
        a(f"s_lshl_b32 s{S_CY}, s{S_CO}, 1")
    else:
        a(f"s_mov_b32 s{S_CY}, 0")
        a(f"s_mov_b32 s{S_CO}, 0")
    a(f"s_mov_b32 s33, {stage_off()}")
    for i in range(6):
        a(f"s_mov_b32 s{34+i}, {(3*1152*i) // 4096 * 4096}")
    a("s_cmp_lt_u32 s3, 4")
    a("s_cbranch_scc1 K3_CONS")
    a("s_cmp_eq_u32 s3, 5")
    a("s_cbranch_scc1 K3_L1")
    a("s_cmp_eq_u32 s3, 6")
    a("s_cbranch_scc1 K3_L2")
    a("s_cmp_eq_u32 s3, 7")
    a("s_cbranch_scc1 K3_L3")
    for lw in range(4):
        loader(a, lw)
    a.label("K3_CONS")
    a("s_and_b32 s5, s3, 1")
    a("s_cmp_ge_u32 s3, 2")
    a("s_cbranch_scc1 K3_C1")
    consumer(a, 0)
    consumer(a, 1)
    a.label("K3_END")
    a("s_endpgm")
```

```python
from layout import *

STAMP_BASE = 0x1800000
NST = 8


ON = False
CYC = False


def mark(a, i):
    if ON:
        a(f"s_memrealtime s[{70+2*i}:{71+2*i}]")
        if CYC:
            a(f"s_memtime s[{50+2*i}:{51+2*i}]")


def instrument(text, label, kidx):
    lines = text.split("\n")
    out = []
    for ln in lines:
        if ln.strip() == label + ":":
            out.append(ln)
            out += ["    s_memrealtime s[70:71]",
                    "    v_lshrrev_b32 v1, 6, v0",
                    "    s_mov_b32 s87, s2",
                    "    v_readfirstlane_b32 s86, v1"]
            for i in range(1, 7):
                out += [f"    s_mov_b32 s{70+2*i}, 0"]
            out += ["    s_waitcnt lgkmcnt(0)", "    s_memtime s[80:81]", "    s_waitcnt lgkmcnt(0)"]
        elif ln.strip() == "s_endpgm":
            out.append(f"    s_branch {label}_STAMP")
        else:
            out.append(ln)
    out += [f"{label}_STAMP:",
            "    s_waitcnt vmcnt(0) lgkmcnt(0)",
            "    s_memrealtime s[84:85]",
            "    s_memtime s[82:83]",
            "    s_load_dwordx2 s[88:89], s[0:1], 120",
            "    s_mov_b32 exec_lo, 1",
            "    s_mov_b32 exec_hi, 0",
            "    s_lshl_b32 s87, s87, 4",
            "    s_add_u32 s87, s87, s86",
            "    s_lshl_b32 s87, s87, 6",
            "    s_getreg_b32 s92, hwreg(HW_REG_HW_ID)",
            "    s_getreg_b32 s93, hwreg(HW_REG_XCC_ID)",
            f"    s_add_u32 s87, s87, {STAMP_BASE + kidx * 0x40000}",
            "    s_waitcnt lgkmcnt(0)",
            f"    s_mov_b32 s90, {WS_REC}",
            "    s_mov_b32 s91, 0x00020000",
            "    v_mov_b32 v8, s87"]
    for i in range(8):
        out.append(f"    v_mov_b32 v{i}, s{70+2*i}")
    out += ["    buffer_store_dwordx4 v[0:3], v8, s[88:91], 0 offen",
            "    buffer_store_dwordx4 v[4:7], v8, s[88:91], 0 offen offset:16",
            "    v_mov_b32 v0, s92",
            "    v_mov_b32 v1, s93",
            "    s_nop 1",
            "    buffer_store_dwordx2 v[0:1], v8, s[88:91], 0 offen offset:32",
            "    v_mov_b32 v4, s52",
            "    v_mov_b32 v5, s54",
            "    v_mov_b32 v6, s56",
            "    v_mov_b32 v7, s58",
            "    s_nop 1",
            "    buffer_store_dwordx4 v[4:7], v8, s[88:91], 0 offen offset:48",
            "    s_waitcnt vmcnt(0)",
            "    s_endpgm"]
    return "\n".join(out) + "\n"
```

```python
import sys
sys.path.insert(0, "g2")
from asmlib import Asm, check_hazards
from layout import *
import stamp
import n1

NAME = "gated_mix__ssm_conv_s5__softmax_full_mha__prompt"

HEADER_COMMON = """; Kernarg layout (128 bytes, pointers only, base s[0:1]):
"""


def kd(name, vgpr, sgpr=64):
    acc = (vgpr + 3) // 4 * 4
    return f""".amdhsa_kernel {name}
  .amdhsa_next_free_vgpr {vgpr}
  .amdhsa_next_free_sgpr {sgpr}
  .amdhsa_accum_offset {acc}
  .amdhsa_group_segment_fixed_size 0
  .amdhsa_kernarg_size 128
  .amdhsa_user_sgpr_count 2
  .amdhsa_user_sgpr_kernarg_segment_ptr 1
  .amdhsa_system_sgpr_workgroup_id_x 1
.end_amdhsa_kernel
"""


def kernels():
    ks = [("k1_kernel", n1.gen_k1, 256, 512, n1.LDS_K1, 208)]
    try:
        import n2
        ks.append(("k2_kernel", n2.gen_k2, 256, n2.THREADS, n2.LDS_K2, n2.VGPRS))
        import n3
        ks.append(("k3_kernel", n3.gen_k3, 256, n3.THREADS, n3.lds_size(), n3.VGPRS))
    except ImportError:
        pass
    return ks


def build(ks=None, order=None, stamps=False):
    ks = ks or kernels()
    order = order or [k[0] for k in ks]
    by = {k[0]: k for k in ks}
    out = HEADER_COMMON
    for n in order:
        _, _, g, b, lds, _ = by[n]
        out += f"; @launch kernel={n} grid=({g},1,1) block=({b},1,1) lds={lds}\n"
    out += '.amdgcn_target "amdgcn-amd-amdhsa--gfx950"\n.text\n'
    nprob = 0
    stamp.ON = stamps
    for label, gen, g, b, lds, vg in ks:
        a = Asm()
        gen(a)
        nprob += len(check_hazards(a.text()))
        txt = a.text()
        if stamps:
            txt = stamp.instrument(txt, label, [k[0] for k in ks].index(label))
        out += f".globl {label}\n.p2align 8\n.type {label},@function\n" + txt
    out += '.section .rodata,"a"\n'
    for label, gen, g, b, lds, vg in ks:
        out += ".p2align 6\n" + kd(label, vg, 100 if stamps else 64)
    return out, nprob


if __name__ == "__main__":
    args = [x for x in sys.argv[1:] if not x.startswith("--")]
    txt, nprob = build(stamps="--stamps" in sys.argv)
    dst = args[0] if args else "n.s"
    open(dst, "w").write(txt)
    print("written", dst, len(txt), "bytes; hazards:", nprob)
```

```python
import sys, re
src, dst = sys.argv[1], sys.argv[2]
k1own, k1k2, k2own = int(sys.argv[3]), int(sys.argv[4]), int(sys.argv[5])
wave = int(sys.argv[6]) if len(sys.argv) > 6 else 3
sh = int(sys.argv[7]) if len(sys.argv) > 7 else 6
L = open(src).read().split('\n')

def addr(voff, vlane, schunk, lo, hi, pc, dstv):
    return [
        f"    v_add_u32 v{voff}, {schunk}, v{vlane}",
        f"    v_min_u32 v{voff}, {hi}, v{voff}",
        f"    v_mov_b32 v{lo+1}, s{pc+1}",
        f"    v_add_co_u32 v{lo}, vcc, s{pc}, v{voff}",
        f"    v_addc_co_u32 v{lo+1}, vcc, 0, v{lo+1}, vcc",
        f"    global_load_dword v{dstv}, v[{lo}:{lo+1}], off",
    ]

chunk_sh = sh + 6
k1_size = "(k2_kernel-k1_kernel)"
tx_size = "(TEXT_END-k1_kernel)"

def nchunks_mask(nbytes):
    n = 1
    while n << chunk_sh < nbytes:
        n *= 2
    return n - 1

i1 = L.index("k1_kernel:")
w1 = next(i for i in range(i1, len(L)) if L[i].strip() == "s_waitcnt lgkmcnt(0)")
ins = []
if k1own or k1k2:
    ins += [f"    s_cmp_eq_u32 s3, {wave}", "    s_cbranch_scc0 K1_PFSKIP",
            "    s_getpc_b64 s[60:61]", "K1_PFA:",
            "    s_sub_u32 s60, s60, K1_PFA-k1_kernel", "    s_subb_u32 s61, s61, 0",
            "    s_lshr_b32 s62, s2, 3",
            f"    v_lshlrev_b32 v208, {sh}, v0"]
    if k1own:
        ins += [f"    s_and_b32 s63, s62, {nchunks_mask(16384)}", f"    s_lshl_b32 s63, s63, {chunk_sh}"]
        ins += addr(209, 208, "s63", 210, k1_size + "-4", 60, 214)
    if k1k2:
        ins += [f"    s_and_b32 s63, s62, {nchunks_mask(32768)}", f"    s_lshl_b32 s63, s63, {chunk_sh}",
                "    s_add_u32 s63, s63, k2_kernel-k1_kernel"]
        ins += addr(209, 208, "s63", 212, tx_size + "-4", 60, 215)
    ins += ["K1_PFSKIP:"]
L[w1:w1] = ins

if k2own:
    h = L.index("K2_HELP:")
    w2 = next(i for i in range(h, len(L)) if L[i].strip() == "s_waitcnt lgkmcnt(0)")
    assert L[h + 1].strip() == "s_sub_u32 s3, s3, 8"
    ins = ["    s_cmp_eq_u32 s3, 3", "    s_cbranch_scc0 K2_PFSKIP",
           "    s_getpc_b64 s[60:61]", "K2_PFA:",
           "    s_sub_u32 s60, s60, K2_PFA-k2_kernel", "    s_subb_u32 s61, s61, 0",
           "    s_lshr_b32 s62, s2, 3",
           f"    v_lshlrev_b32 v160, {sh}, v0",
           f"    s_and_b32 s63, s62, {nchunks_mask(32768)}", f"    s_lshl_b32 s63, s63, {chunk_sh}"]
    ins += addr(161, 160, "s63", 162, "(TEXT_END-k2_kernel)-4", 60, 164)
    ins += ["K2_PFSKIP:"]
    L[w2:w2] = ins

e = L.index("K2_END:")
assert L[e + 1].strip() == "s_endpgm"
L[e + 2:e + 2] = ["TEXT_END:"]
t = '\n'.join(L)
if k1own or k1k2:
    t = t.replace(".amdhsa_next_free_vgpr 208", ".amdhsa_next_free_vgpr 216").replace(".amdhsa_accum_offset 208", ".amdhsa_accum_offset 216")
open(dst, 'w').write(t)
```

```python
import sys, re
src, dst = sys.argv[1], sys.argv[2]
m1, m12, m2, k2w = (int(x) for x in sys.argv[3:7])
wave = int(sys.argv[7]) if len(sys.argv) > 7 else 3
L = open(src).read().split('\n')

def addr(voff, vlane, lo, hi, dstv):
    return [
        f"    v_add_u32 v{voff}, s63, v{vlane}",
        f"    v_min_u32 v{voff}, {hi}, v{voff}",
        f"    v_mov_b32 v{lo+1}, s61",
        f"    v_add_co_u32 v{lo}, vcc, s60, v{voff}",
        f"    v_addc_co_u32 v{lo+1}, vcc, 0, v{lo+1}, vcc",
        f"    global_load_dword v{dstv}, v[{lo}:{lo+1}], off",
    ]

def used(lines):
    u = set()
    for ln in lines:
        ln = ln.split(';')[0]
        for a, b in re.findall(r'v\[(\d+):(\d+)\]', ln):
            u.update(range(int(a), int(b) + 1))
        u.update(int(a) for a in re.findall(r'\bv(\d+)\b', ln))
    return u

def top(kern):
    i = L.index(kern + ":")
    return next(j for j in range(i, len(L)) if L[j].strip() == "v_readfirstlane_b32 s3, v1") + 1

e = L.index("K2_END:")
L[e + 2:e + 2] = ["TEXT_END:"]

if m2 >= 0:
    t2 = top("k2_kernel")
    h = L.index("K2_HELP:")
    br = next(j for j in range(t2, len(L)) if L[j].strip() == "s_cbranch_scc1 K2_HELP")
    u = used(L[t2:br]) | used(L[h:])
    b = next(r for r in range(166 - 6, 20, -2) if not any(x in u for x in range(r, r + 6)))
    print("K2 regs", b)
    if k2w == 1:
        ins = ["    s_cmp_eq_u32 s3, 11", "    s_cbranch_scc0 K2_PFSKIP", "    s_lshr_b32 s62, s2, 3",
               f"    s_and_b32 s63, s62, {m2}"]
    else:
        ins = ["    s_cmp_ge_u32 s3, 10", "    s_cbranch_scc0 K2_PFSKIP", "    s_lshr_b32 s62, s2, 2",
               "    s_and_b32 s62, s62, -2", "    s_and_b32 s63, s3, 1", "    s_or_b32 s63, s63, s62",
               f"    s_and_b32 s63, s63, {m2}"]
    ins += ["    s_lshl_b32 s63, s63, 13", "    s_getpc_b64 s[60:61]", "K2_PFA:",
            "    s_sub_u32 s60, s60, K2_PFA-k2_kernel", "    s_subb_u32 s61, s61, 0",
            f"    v_lshlrev_b32 v{b}, 7, v0"]
    ins += addr(b + 1, b, b + 2, "(TEXT_END-k2_kernel)-4", b + 4) + ["K2_PFSKIP:"]
    L[t2:t2] = ins

if m1 >= 0 or m12 >= 0:
    t1 = top("k1_kernel")
    ins = [f"    s_cmp_eq_u32 s3, {wave}", "    s_cbranch_scc0 K1_PFSKIP",
           "    s_getpc_b64 s[60:61]", "K1_PFA:",
           "    s_sub_u32 s60, s60, K1_PFA-k1_kernel", "    s_subb_u32 s61, s61, 0",
           "    s_lshr_b32 s62, s2, 3", "    v_lshlrev_b32 vA0, 7, v0"]
    if m1 >= 0:
        ins += [f"    s_and_b32 s63, s62, {m1}", "    s_lshl_b32 s63, s63, 13"]
        ins += addr("A1", "A0", 0, "(k2_kernel-k1_kernel)-4", "A6")
    if m12 >= 0:
        ins += [f"    s_and_b32 s63, s62, {m12}", "    s_lshl_b32 s63, s63, 13",
                "    s_add_u32 s63, s63, k2_kernel-k1_kernel"]
        ins += addr("A1", "A0", 0, "(TEXT_END-k1_kernel)-4", "A7")
    ins += ["K1_PFSKIP:"]
    txt = '\n'.join(L)
    nv = int(re.search(r'amdhsa_kernel k1_kernel\s+\.amdhsa_next_free_vgpr (\d+)', txt).group(1))
    assert nv % 8 == 0 and nv <= 248, nv
    out, pair = [], 0
    for ln in ins:
        if "v_mov_b32 v1, s61" in ln:
            pair += 1
        p = nv + 2 * pair
        ln = ln.replace("v_mov_b32 v1, s61", f"v_mov_b32 v{p+1}, s61")
        ln = ln.replace("v_add_co_u32 v0,", f"v_add_co_u32 v{p},")
        ln = ln.replace("v_addc_co_u32 v1, vcc, 0, v1, vcc", f"v_addc_co_u32 v{p+1}, vcc, 0, v{p+1}, vcc")
        ln = ln.replace("v[0:1]", f"v[{p}:{p+1}]")
        ln = re.sub(r'vA(\d)', lambda m: f"v{nv+int(m.group(1))}", ln)
        out.append(ln)
    L[t1:t1] = out
    txt = '\n'.join(L)
    txt = re.sub(r'(amdhsa_kernel k1_kernel\s+\.amdhsa_next_free_vgpr )\d+', lambda m: m.group(1) + str(nv + 8), txt)
    txt = re.sub(r'(amdhsa_kernel k1_kernel.*?\.amdhsa_accum_offset )\d+', lambda m: m.group(1) + str(nv + 8), txt, count=1, flags=re.S)
    L = txt.split('\n')
open(dst, 'w').write('\n'.join(L))
```

```python
import sys, re
src, dst, mask, kd = sys.argv[1], sys.argv[2], int(sys.argv[3]), int(sys.argv[4])
L = open(src).read().split('\n')
i1 = L.index("k1_kernel:")
i2 = L.index("k2_kernel:")
assert not any(re.search(r'\bs64\b', x) for x in L[i1:i2])
nv = int(re.search(r'amdhsa_kernel k1_kernel\s+\.amdhsa_next_free_vgpr (\d+)', '\n'.join(L)).group(1)) - 8
ends = [j for j in range(i1, i2) if L[j].strip() == "s_endpgm"][:4]
for i, j in reversed(list(enumerate(ends))):
    assert L[j - 1].strip() == "s_barrier" and re.match(r'K1_(L\d|CONS):', L[j + 1]), (L[j - 1], L[j + 1])
    ins = []
    if mask >= 0:
        ins += ["    s_mov_b64 exec, -1", "    s_getpc_b64 s[60:61]", f"K1_PFT{i}:",
                f"    s_sub_u32 s60, s60, K1_PFT{i}-k1_kernel", "    s_subb_u32 s61, s61, 0",
                "    s_and_b32 s63, s64, 1", "    s_lshl_b32 s63, s63, 2", f"    s_add_u32 s63, s63, {i}",
                f"    s_and_b32 s63, s63, {mask}", "    s_lshl_b32 s63, s63, 13",
                "    s_add_u32 s63, s63, k2_kernel-k1_kernel",
                f"    v_mbcnt_lo_u32_b32 v{nv}, -1, 0", f"    v_mbcnt_hi_u32_b32 v{nv}, -1, v{nv}",
                f"    v_lshlrev_b32 v{nv}, 7, v{nv}", f"    v_add_u32 v{nv}, s63, v{nv}",
                f"    v_min_u32 v{nv}, (TEXT_END-k1_kernel)-4, v{nv}",
                f"    v_mov_b32 v{nv+3}, s61", f"    v_add_co_u32 v{nv+2}, vcc, s60, v{nv}",
                f"    v_addc_co_u32 v{nv+3}, vcc, 0, v{nv+3}, vcc",
                f"    global_load_dword v{nv+6}, v[{nv+2}:{nv+3}], off"]
    if kd and i == 0:
        ins += ["    s_mov_b64 exec, -1", "    s_getpc_b64 s[60:61]",
                "    s_add_u32 s60, s60, K2_KD@rel32@lo+4", "    s_addc_u32 s61, s61, K2_KD@rel32@hi+12",
                f"    v_mov_b32 v{nv+4}, s60", f"    v_mov_b32 v{nv+5}, s61",
                f"    global_load_dword v{nv+7}, v[{nv+4}:{nv+5}], off"]
    if ins:
        ins += ["    s_waitcnt vmcnt(0)"]
    L[j:j] = ins
t = next(j for j in range(i1, len(L)) if L[j].strip() == "v_readfirstlane_b32 s3, v1") + 1
L[t:t] = ["    s_lshr_b32 s64, s2, 3"]
if kd:
    k = L.index(".amdhsa_kernel k2_kernel")
    assert L[k - 1].strip() == ".p2align 6"
    L[k:k] = ["K2_KD:"]
txt = '\n'.join(L)
txt = re.sub(r'(amdhsa_kernel k1_kernel.*?\.amdhsa_next_free_sgpr )(\d+)', lambda m: m.group(1) + str(max(int(m.group(2)), 72)), txt, count=1, flags=re.S)
open(dst, 'w').write(txt)
```
